```python
import torch

def _softmax(x, axis=-1):
    return torch.softmax(x, dim=axis)
def _gelu(x):
    return torch.nn.functional.gelu(x, approximate="tanh")
def _silu(x):
    return torch.nn.functional.silu(x)
def _sigmoid(x):
    return torch.sigmoid(x)
def _layernorm(x, axis=-1, eps=1e-5):
    m = x.mean(dim=axis, keepdim=True)
    v = x.var(dim=axis, keepdim=True, unbiased=False)
    return (x - m) / torch.sqrt(v + eps)
def _scatter_add(tgt, idx, src, axis=0):
    return tgt.clone().index_add_(axis, idx, src)
def _segment_sum(src, seg, n):
    out = torch.zeros((n,) + src.shape[1:], dtype=src.dtype)
    return out.index_add_(0, seg, src)
def _pad(x, pw):
    flat = tuple(v for pair in reversed(pw) for v in pair)
    return torch.nn.functional.pad(x, flat)

kernel_name = 'interleave_layers__grouped_kv_mqa__glu_gated_glu__prompt'

def setup_inputs():

    _w = (lambda a: (lambda t: t.to(torch.bfloat16) if t.is_floating_point() else t)(torch.as_tensor(a)))
    def _A_setup():
        B, S, D, H = 1, 2048, 448, 16
        Dh = D // H
        return {
            "x": _w((lambda *s: torch.randn(*s, dtype=torch.bfloat16) * 0.05)(B, S, D)),
            "wq": _w((lambda *s: torch.randn(*s, dtype=torch.bfloat16) * 0.05)(D, H * Dh)),
            "wk": _w((lambda *s: torch.randn(*s, dtype=torch.bfloat16) * 0.05)(D, Dh)),
            "wv": _w((lambda *s: torch.randn(*s, dtype=torch.bfloat16) * 0.05)(D, Dh)),
            "wo": _w((lambda *s: torch.randn(*s, dtype=torch.bfloat16) * 0.05)(H * Dh, D)),
        }
    _A_in = _A_setup()

    def _B_setup():
        B, S, D, F = 1, 2048, 448, 1792
        return {
            "x": _w((lambda *s: torch.randn(*s, dtype=torch.bfloat16) * 0.05)(B, S, D)),
            "w_gate": _w((lambda *s: torch.randn(*s, dtype=torch.bfloat16) * 0.05)(D, F)),
            "w_up": _w((lambda *s: torch.randn(*s, dtype=torch.bfloat16) * 0.05)(D, F)),
            "w_down": _w((lambda *s: torch.randn(*s, dtype=torch.bfloat16) * 0.05)(F, D)),
        }
    _B_in = _B_setup()

    return {
        "A_x": _A_in["x"],
        "A_wq": _A_in["wq"],
        "A_wk": _A_in["wk"],
        "A_wv": _A_in["wv"],
        "A_wo": _A_in["wo"],
        "B_x": _B_in["x"],
        "B_w_gate": _B_in["w_gate"],
        "B_w_up": _B_in["w_up"],
        "B_w_down": _B_in["w_down"],
    }

def reference(A_x, A_wq, A_wk, A_wv, A_wo, B_x, B_w_gate, B_w_up, B_w_down):
    def _A_ref(x, wq, wk, wv, wo):
        B, S, D = x.shape
        H = 16
        Dh = D // H
        q = (lambda x, *d: x.permute(*d))((x @ wq).reshape(B, S, H, Dh), 0, 2, 1, 3)
        k = x @ wk
        v = x @ wv
        scores = torch.einsum("bhqd,bkd->bhqk", q, k) * (Dh ** -0.5)
        p = _softmax(scores, axis=-1)
        o = torch.einsum("bhqk,bkd->bhqd", p, v)
        return (lambda x, *d: x.permute(*d))(o, 0, 2, 1, 3).reshape(B, S, H * Dh) @ wo

    def _B_ref(x, w_gate, w_up, w_down):
        g = torch.einsum("bsd,df->bsf", x, w_gate)
        u = torch.einsum("bsd,df->bsf", x, w_up)
        h = _sigmoid(g) * u
        return torch.einsum("bsf,fd->bsd", h, w_down)

    x = A_x
    x = x + _A_ref(_layernorm(x, axis=-1), A_wq, A_wk, A_wv, A_wo)
    x = x + _B_ref(_layernorm(x, axis=-1), B_w_gate, B_w_up, B_w_down)
    x = x + _A_ref(_layernorm(x, axis=-1), A_wq, A_wk, A_wv, A_wo)
    x = x + _B_ref(_layernorm(x, axis=-1), B_w_gate, B_w_up, B_w_down)
    return x
```

```python
from asmlib import *
KB = 1024
WQF = 0
WKF = WQF + 16*28*KB
WVF = WKF + 28*KB
WOF = WVF + 28*KB
WGU = WOF + 14*32*KB
WDF = WGU + 112*28*KB
CS  = WDF + 14*112*KB
XF  = [CS + 17*KB + i*64*28*KB for i in range(4)]
ST  = [XF[3] + 64*28*KB + i*64*14*256 for i in range(4)]
KVF = [ST[3] + 64*14*256 + i*64*4*KB for i in range(2)]
OF  = [KVF[1] + 64*4*KB + i*64*32*KB for i in range(2)]
HF  = [OF[1] + 64*32*KB + i*64*112*KB for i in range(2)]
FLG = HF[1] + 64*112*KB
WS_END = FLG + 64*KB
MF = "v_mfma_f32_32x32x16_bf16"
OOB = 0x40000000
QSCALE = (28 ** -0.5) * 1.4426950408889634
import struct
def f2u(x): return struct.unpack('<I', struct.pack('<f', x))[0]
def fhex(x): return hex(f2u(x))

S_WG, S_W = 2, 3
SRD_WS = 8
SRD_A = 12
SRD_B = 16
def prologue(a, nwg, extra_ptrs=()):
    end = a.label('Lend')
    a(f"s_cmp_ge_u32 s2, {nwg}\ns_cbranch_scc1 {end}")
    a(f"s_load_dwordx2 s[{SRD_WS}:{SRD_WS+1}], s[0:1], 88")
    for off, srd, nb in extra_ptrs:
        a(f"s_load_dwordx2 s[{srd}:{srd+1}], s[0:1], {off}")
    a("v_lshrrev_b32 v1, 6, v0\nv_and_b32 v0, 63, v0")
    a(f"v_readfirstlane_b32 s{S_W}, v1")
    a("v_and_b32 v1, 31, v0\nv_lshrrev_b32 v2, 5, v0\nv_lshlrev_b32 v0, 4, v0")
    a(f"s_mov_b32 s{SRD_WS+2}, {WS_END}\ns_mov_b32 s{SRD_WS+3}, 0x20000")
    for off, srd, nb in extra_ptrs:
        a(f"s_mov_b32 s{srd+2}, {nb}\ns_mov_b32 s{srd+3}, 0x20000")
    a("s_waitcnt lgkmcnt(0)")
    return end

def ld_frag(a, dst, soff, imm, voff=0, flags=''):
    a(f"buffer_load_dwordx4 {R(dst,4)}, v{voff}, s[{SRD_WS}:{SRD_WS+3}], s{soff} offen offset:{imm}{flags}")
def ld_frags(a, dst, n, soff, voff=0, flags='', stride=4):
    for i in range(n):
        if i and i % 4 == 0: a(f"s_add_u32 s{soff}, s{soff}, 4096")
        ld_frag(a, dst + stride*i, soff, (i % 4)*KB, voff, flags)
def dma_frags(a, n, soff, sm0, voff=0, flags=''):
    for i in range(n):
        if i % 4 == 0:
            if i: a(f"s_add_u32 s{soff}, s{soff}, 4096\ns_add_u32 s{sm0}, s{sm0}, 4096")
            a(f"s_mov_b32 m0, s{sm0}\ns_nop 0")
        a(f"buffer_load_dwordx4 v{voff}, s[{SRD_WS}:{SRD_WS+3}], s{soff} offen offset:{(i%4)*KB}{flags} lds")
def st_frag(a, src, soff, imm, voff=0, flags=''):
    a(f"buffer_store_dwordx4 {R(src,4)}, v{voff}, s[{SRD_WS}:{SRD_WS+3}], s{soff} offen offset:{imm}{flags}")

def xhalf_sum(a, v, t):
    a(f"v_mov_b32 v{t}, v{v}\ns_nop 1\nv_permlane32_swap_b32 v{t}, v{v}\ns_nop 1\nv_add_f32 v{v}, v{v}, v{t}")

def ld_stats(a, dst, soff, vtmp, flags=''):
    a(f"v_mul_u32_u24 v{vtmp}, {7*256}, v2\nv_lshl_add_u32 v{vtmp}, v1, 3, v{vtmp}")
    for i in range(7):
        a(f"buffer_load_dwordx2 {vr(dst+2*i,2)}, v{vtmp}, s[{SRD_WS}:{SRD_WS+3}], s{soff} offen offset:{i*256}{flags}")
def fin_stats(a, src, mu, rs, t):
    for i in (1, 3, 5):
        a(f"v_add_f32 v{src+2*i}, v{src+2*i}, v{src+2*i+2}\nv_add_f32 v{src+2*i+1}, v{src+2*i+1}, v{src+2*i+3}")
    a(f"v_add_f32 v{src}, v{src}, v{src+2}\nv_add_f32 v{src+1}, v{src+1}, v{src+3}")
    a(f"v_add_f32 v{src+6}, v{src+6}, v{src+10}\nv_add_f32 v{src+7}, v{src+7}, v{src+11}")
    a(f"v_add_f32 v{mu}, v{src}, v{src+6}\nv_add_f32 v{rs}, v{src+1}, v{src+7}")
    a(f"v_mov_b32 v{t}, v{mu}\nv_mov_b32 v{t+1}, v{rs}\ns_nop 1")
    a(f"v_permlane32_swap_b32 v{t}, v{mu}\nv_permlane32_swap_b32 v{t+1}, v{rs}\ns_nop 1")
    a(f"v_add_f32 v{mu}, v{mu}, v{t}\nv_add_f32 v{rs}, v{rs}, v{t+1}")
    a(f"v_mul_f32 v{mu}, {fhex(1/448)}, v{mu}\nv_mul_f32 v{rs}, {fhex(1/448)}, v{rs}")
    a(f"v_fma_f32 v{rs}, -v{mu}, v{mu}, v{rs}\nv_max_f32 v{rs}, 0, v{rs}\nv_add_f32 v{rs}, {fhex(1e-5)}, v{rs}")
    a(f"v_rsq_f32 v{rs}, v{rs}\ns_nop 0")
def ld_cs(a, dst, soff, vtmp):
    a(f"v_lshlrev_b32 v{vtmp}, 4, v2")
    for q in range(4):
        a(f"buffer_load_dwordx4 {vr(dst+4*q,4)}, v{vtmp}, s[{SRD_WS}:{SRD_WS+3}], s{soff} offen offset:{32*q}")
def resid_epilogue(a, acc, res, t, s_x, s_st, vtmp, flags='', final_srd=None, s_out=None):
    for i in range(8):
        a(f"v_lshlrev_b32 v{t}, 16, v{res+i}\nv_and_b32 v{t+1}, 0xffff0000, v{res+i}")
        a(f"v_add_f32 v{acc+2*i}, v{acc+2*i}, v{t}\nv_add_f32 v{acc+2*i+1}, v{acc+2*i+1}, v{t+1}")
    for i in range(8):
        a(f"v_cvt_pk_bf16_f32 v{res+i}, v{acc+2*i}, v{acc+2*i+1}")
    if final_srd is None:
        st_frag(a, res, s_x, 0, 0, flags); st_frag(a, res+4, s_x, KB, 0, flags)
        a(f"v_add_f32 v{t}, v{acc}, v{acc+1}\nv_mul_f32 v{t+1}, v{acc}, v{acc}\nv_fmac_f32 v{t+1}, v{acc+1}, v{acc+1}")
        for i in range(2, 16):
            a(f"v_add_f32 v{t}, v{t}, v{acc+i}\nv_fmac_f32 v{t+1}, v{acc+i}, v{acc+i}")
        a(f"v_mov_b32 v{t+2}, v{t}\nv_mov_b32 v{t+3}, v{t+1}\nv_lshlrev_b32 v{vtmp}, 3, v1\ns_nop 0")
        a(f"v_permlane32_swap_b32 v{t+2}, v{t}\nv_permlane32_swap_b32 v{t+3}, v{t+1}\ns_nop 1")
        a(f"v_add_f32 v{t}, v{t}, v{t+2}\nv_add_f32 v{t+1}, v{t+1}, v{t+3}")
        a(f"s_mov_b32 exec_hi, 0")
        a(f"buffer_store_dwordx2 {vr(t,2)}, v{vtmp}, s[{SRD_WS}:{SRD_WS+3}], s{s_st} offen{flags}")
        a(f"s_mov_b64 exec, -1")
    else:
        a("s_nop 1")
        a(f"v_permlane32_swap_b32 v{res}, v{res+2}\nv_permlane32_swap_b32 v{res+1}, v{res+3}")
        a(f"v_permlane32_swap_b32 v{res+4}, v{res+6}\nv_permlane32_swap_b32 v{res+5}, v{res+7}")
        a(f"v_mul_u32_u24 v{vtmp}, 896, v1\nv_lshl_add_u32 v{vtmp}, v2, 4, v{vtmp}")
        a(f"buffer_store_dwordx4 {vr(res,4)}, v{vtmp}, s[{final_srd}:{final_srd+3}], s{s_out} offen")
        a(f"buffer_store_dwordx4 {vr(res+4,4)}, v{vtmp}, s[{final_srd}:{final_srd+3}], s{s_out} offen offset:32")
```

```python
from common import *
T0, PK = 16, 80
def unit(a, srd, rowbytes, steps, s_row, s_dst, v_src, v_dst, cs=None):
    cur = 0
    for i, rows in enumerate(steps):
        for j, r in enumerate(rows):
            if r is None:
                a(f"v_mov_b32 v{T0+8*i+j}, 0"); continue
            d = (r - cur) * rowbytes
            if d > 4095 or d < 0:
                a(f"s_add_u32 s{s_row}, s{s_row}, {d}"); cur = r; d = 0
            a(f"buffer_load_ushort v{T0+8*i+j}, v{v_src}, s[{srd}:{srd+3}], s{s_row} offen offset:{d}")
    n = len(steps)
    if cs: a("v_mov_b32 v8, 0\nv_mov_b32 v9, 0")
    a("s_waitcnt vmcnt(0)")
    for i in range(n):
        for d in range(4):
            lo, hi = T0+8*i+2*d, T0+8*i+2*d+1
            a(f"v_lshl_or_b32 v{PK+4*i+d}, v{hi}, 16, v{lo}")
        if i and i % 4 == 0: a(f"s_add_u32 s{s_dst}, s{s_dst}, 4096")
        st_frag(a, PK+4*i, s_dst, (i % 4)*KB, v_dst)
    if cs:
        s_cs, v_cs = cs
        for i in range(n*4):
            lo, hi = T0+2*i, T0+2*i+1
            a(f"v_lshlrev_b32 v{lo}, 16, v{lo}\nv_lshlrev_b32 v{hi}, 16, v{hi}\nv_add_f32 v8, v8, v{lo}\nv_add_f32 v9, v9, v{hi}")
        a("v_add_f32 v8, v8, v9")
        xhalf_sum(a, 8, 9)
        a(f"s_lshl_b32 s30, s{S_W}, 7\nv_lshl_add_u32 v9, v1, 2, s30\nds_write_b32 v9, v8\ns_waitcnt lgkmcnt(0)\ns_barrier")
        a("v_lshlrev_b32 v9, 2, v1\nds_read_b32 v10, v9\nds_read_b32 v11, v9 offset:128\nds_read_b32 v12, v9 offset:256\nds_read_b32 v13, v9 offset:384")
        a("s_waitcnt lgkmcnt(0)\nv_add_f32 v10, v10, v11\nv_add_f32 v12, v12, v13\nv_add_f32 v10, v10, v12")
        skip = a.label('Lcs')
        a(f"s_cmp_lg_u32 s{S_W}, 0\ns_cbranch_scc1 {skip}\ns_mov_b32 exec_hi, 0")
        a(f"buffer_store_dword v10, v{v_cs}, s[{SRD_WS}:{SRD_WS+3}], s{s_cs} offen\ns_mov_b64 exec, -1\n{skip}:")
canon = [[16*i + 8*(j >> 2) + (j & 3) for j in range(8)] for i in range(7)]
def load_srd(a, off, nb):
    a(f"s_load_dwordx2 s[{SRD_A}:{SRD_A+1}], s[0:1], {off}\ns_mov_b32 s{SRD_A+2}, {nb}\ns_mov_b32 s{SRD_A+3}, 0x20000\ns_waitcnt lgkmcnt(0)")
def prep_body(a, done):
    Lup, Lq, Lk, Lv, Lo, Ld, Lx = [a.label('Lprep') for _ in range(7)]
    for lim, lab in ((200, Lx), (144, Ld), (130, Lo), (129, Lv), (128, Lk), (112, Lq), (56, Lup)):
        a(f"s_cmp_ge_u32 s2, {lim}\ns_cbranch_scc1 {lab}")
    for up in (0, 1):
        if up: a(f"{Lup}:\ns_sub_u32 s2, s2, 56")
        load_srd(a, 56 if up else 48, 448*1792*2)
        a(f"s_mul_i32 s20, s{S_W}, {7*16*3584}\ns_lshl_b32 s21, s2, 6\ns_add_u32 s20, s20, s21")
        a(f"v_mul_u32_u24 v4, {4*3584}, v2\nv_lshl_add_u32 v4, v1, 1, v4")
        a(f"s_mul_i32 s21, s2, {2*28*KB}\ns_mul_i32 s22, s{S_W}, {7*KB}\ns_add_u32 s21, s21, s22\ns_add_u32 s21, s21, {WGU}")
        a(f"v_lshrrev_b32 v6, 4, v1\nv_and_b32 v7, 15, v1\nv_mul_u32_u24 v5, {28*KB}, v6\nv_lshl_add_u32 v5, v2, 9, v5\nv_lshl_add_u32 v5, v7, 4, v5")
        a(f"v_lshlrev_b32 v6, 7, v6\nv_lshl_add_u32 v6, v7, 2, v6")
        if up: a("v_add_u32 v5, 256, v5\nv_add_u32 v6, 64, v6")
        a(f"s_lshl_b32 s22, s2, 8\ns_add_u32 s22, s22, {CS + 18*128}")
        unit(a, SRD_A, 3584, canon, 20, 21, 4, 5, (22, 6))
        a(f"s_branch {done}")
    a(f"{Lq}:\ns_sub_u32 s2, s2, 112"); load_srd(a, 8, 448*448*2)
    a(f"s_mul_i32 s20, s{S_W}, {7*16*896}\ns_mul_i32 s21, s2, 56\ns_add_u32 s20, s20, s21")
    a(f"v_mul_u32_u24 v4, {4*896}, v2\nv_lshl_add_u32 v4, v1, 1, v4\nv_mov_b32 v5, {OOB}\nv_cmp_gt_u32 vcc, 28, v1\ns_nop 1\nv_cndmask_b32 v4, v5, v4, vcc")
    a(f"s_mul_i32 s21, s2, {28*KB}\ns_mul_i32 s22, s{S_W}, {7*KB}\ns_add_u32 s21, s21, s22\ns_add_u32 s21, s21, {WQF}")
    a(f"v_lshlrev_b32 v6, 2, v1\ns_lshl_b32 s22, s2, 7\ns_add_u32 s22, s22, {CS}")
    unit(a, SRD_A, 896, canon, 20, 21, 4, 0, (22, 6)); a(f"s_branch {done}")
    for isv, lab in ((0, Lk), (1, Lv)):
        a(f"{lab}:"); load_srd(a, 24 if isv else 16, 448*28*2)
        a(f"s_mul_i32 s20, s{S_W}, {7*16*56}")
        if isv:
            a("v_and_b32 v5, 3, v1\nv_lshrrev_b32 v6, 3, v1\nv_lshl_add_u32 v5, v6, 2, v5\nv_bfe_u32 v6, v1, 2, 1\nv_mul_u32_u24 v6, 14, v6\nv_add_u32 v6, v6, v5")
            a("v_cmp_gt_u32 vcc, 14, v5")
        else:
            a("v_mov_b32 v6, v1\nv_cmp_gt_u32 vcc, 28, v1")
        a(f"v_mul_u32_u24 v4, {4*56}, v2\nv_lshl_add_u32 v4, v6, 1, v4\nv_mov_b32 v5, {OOB}\nv_cndmask_b32 v4, v5, v4, vcc")
        a(f"s_mul_i32 s21, s{S_W}, {7*KB}\ns_add_u32 s21, s21, {WVF if isv else WKF}")
        a(f"v_lshlrev_b32 v6, 2, v1\ns_mov_b32 s22, {CS + (16+isv)*128}")
        unit(a, SRD_A, 56, canon, 20, 21, 4, 0, (22, 6)); a(f"s_branch {done}")
    a(f"{Lo}:\ns_sub_u32 s2, s2, 130"); load_srd(a, 32, 448*448*2)
    a(f"s_mul_i32 s20, s{S_W}, {4*28*896}\ns_lshl_b32 s21, s2, 6\ns_add_u32 s20, s20, s21")
    a(f"v_mul_u32_u24 v4, {14*896}, v2\nv_lshl_add_u32 v4, v1, 1, v4")
    a(f"s_lshl_b32 s21, s2, 15\ns_lshl_b32 s22, s{S_W}, 13\ns_add_u32 s21, s21, s22\ns_add_u32 s21, s21, {WOF}")
    osteps = [[(28*(i >> 1) + 8*(i & 1) + j) if 8*(i & 1) + j < 14 else None for j in range(8)] for i in range(8)]
    unit(a, SRD_A, 896, osteps, 20, 21, 4, 0); a(f"s_branch {done}")
    a(f"{Ld}:\ns_sub_u32 s2, s2, 144"); load_srd(a, 64, 448*1792*2)
    a(f"s_and_b32 s22, s2, 3\ns_lshr_b32 s23, s2, 2\ns_lshl_b32 s22, s22, 2\ns_add_u32 s22, s22, s{S_W}")
    a(f"s_mul_i32 s20, s22, {7*16*896}\ns_lshl_b32 s21, s23, 6\ns_add_u32 s20, s20, s21")
    a(f"v_mul_u32_u24 v4, {4*896}, v2\nv_lshl_add_u32 v4, v1, 1, v4")
    a(f"s_mul_i32 s21, s23, {112*KB}\ns_mul_i32 s22, s22, {7*KB}\ns_add_u32 s21, s21, s22\ns_add_u32 s21, s21, {WDF}")
    unit(a, SRD_A, 896, canon, 20, 21, 4, 0); a(f"s_branch {done}")
    a(f"{Lx}:\ns_sub_u32 s2, s2, 200"); load_srd(a, 0, 2048*896)
    a(f"v_mul_u32_u24 v4, 896, v1\nv_lshl_add_u32 v4, v2, 3, v4")
    a(f"s_mul_i32 s20, s2, {32*896}\ns_lshl_b32 s21, s{S_W}, 6\ns_add_u32 s20, s20, s21")
    for i in range(4):
        for q in range(4):
            a(f"buffer_load_dwordx2 {vr(16+8*i+2*q,2)}, v4, s[{SRD_A}:{SRD_A+3}], s20 offen offset:{256*i+16*q}")
    a(f"s_mul_i32 s21, s2, {28*KB}\ns_lshl_b32 s22, s{S_W}, 11\ns_add_u32 s21, s21, s22\ns_add_u32 s21, s21, {XF[0]}")
    a(f"s_mul_i32 s22, s2, {14*256}\ns_lshl_b32 s23, s{S_W}, 8\ns_add_u32 s22, s22, s23\ns_add_u32 s22, s22, {ST[0]}")
    a("s_waitcnt vmcnt(0)")
    for i in range(4):
        if i == 3: a(f"s_cmp_ge_u32 s{S_W}, 2\ns_cbranch_scc1 {done}")
        for r in range(16): a(f"v_mov_b32 v{64+r}, 0")
        resid_epilogue(a, 64, 16+8*i, 48, 21, 22, 5)
        a("s_add_u32 s21, s21, 8192\ns_add_u32 s22, s22, 1024")
    a(f"s_branch {done}")
def prep_kernel():
    a = Asm(); a.nlabel = 1000
    end = prologue(a, 264)
    prep_body(a, end)
    a(f"{end}:\ns_endpgm")
    return a.text()
```

```python
import sys
from common import *
from k_prep import *; from k_kv import *; from k_att import *; from k_ffn import *
def build(path, gmode=0, dmode=0, nempty=0):
    ks = [("prep_kernel", prep_kernel(), 112, 0, 40)]
    ls = [("prep_kernel", 264, 256, 512)]
    for l in range(2):
        ks += [(f"kv{l}_kernel", kv_kernel(l), 164, 0, 40), (f"att{l}_kernel", att_kernel(l), 256, 112, 40),
               (f"op{l}_kernel", oproj_kernel(l), 96, 0, 40), (f"gu{l}_kernel", gu_kernel(l, gmode), 116, 0, 40),
               (f"dn{l}_kernel", down_kernel(l, dmode), 256, 0, 40)]
        ls += [(f"kv{l}_kernel", 64, 256, 33*KB), (f"att{l}_kernel", 256, 256, ATT_LDS), (f"op{l}_kernel", 256, 256, 32*KB),
               (f"gu{l}_kernel", 256, 256, GU_LDS), (f"dn{l}_kernel", 224, 256, DOWN_LDS)]
    ks = [(n, b, 256 if n[:2] in ('op', 'gu') else v, 128 if n[:2] in ('op', 'gu') else ag, s) for n, b, v, ag, s in ks]
    if nempty:
        ks.append(("empty_kernel", "s_endpgm", 8, 0, 16))
        ls += [("empty_kernel", 256, 256, 0)] * nempty
    open(path, 'w').write(build_file(ks, ls))
    return assemble(path, 'x')
if __name__ == '__main__':
    build('v1.s')
    build('v1_e10.s', nempty=10)
    build('v1_m11.s', 1, 1)
```

```python
from p_common import *
from p_prep import kv_core, XK
Q, S, P, O, KVR, RES = 16, 48, 80, 96, 160, 224
WO = 256 + 128
def kv_ld(a, b, isv):
    if isv == 0: a(f"s_mov_b32 s26, {b*4096}")
    else: a(f"s_mov_b32 s27, {b*4096}")
    for i in range(2):
        a.v(f"buffer_load_dwordx4 {R(KVR+16*(b&3)+8*isv+4*i,4)}, v0, {srd(SRD_KV)}, s{26+isv} offen offset:{(2*isv+i)*KB}", ('kv', b, isv))
def kv_srd(a):
    a(f"s_lshl_b32 s24, s{S_W}, 16\ns_add_u32 s24, s24, s{S_LB}\ns_add_u32 s24, s24, {KVO}\ns_add_u32 s{SRD_KV}, s{WS}, s24\ns_addc_u32 s{SRD_KV+1}, s{WS+1}, 0")
    a(f"s_mov_b32 s{SRD_KV+2}, 65536\ns_mov_b32 s{SRD_KV+3}, 0x20000")
def kv_first(a):
    for b in range(4):
        kv_ld(a, b, 0)
        if b < 3: kv_ld(a, b, 1)
def qk(a, h, slot, sb, half):
    a(f"{MF} {vr(S+16*sb,16)}, {R(KVR+16*slot+4*half,4)}, {vr(Q+8*h+4*half,4)}, {vr(S+16*sb,16) if half else 0}")
def pv(a, h, slot, pb, half, first=False):
    a(f"{MF} {R(O+16*h,16)}, {R(KVR+16*slot+8+4*half,4)}, {vr(P+8*pb+4*half,4)}, {0 if first and not half else R(O+16*h,16)}")
def dma7(a, t, slot, tag):
    def f(i):
        def g():
            if i % 4 == 0: a(f"s_add_u32 s46, s44, {t*28*KB + i*KB}\ns_add_u32 m0, s45, {slot + i*KB}\ns_nop 0")
            a.v(f"buffer_load_dwordx4 v0, {srd(WS)}, s46 offen offset:{(i%4)*KB} lds", tag)
        return g
    return [f(i) for i in range(7)]
def att_prefetch(a):
    a(f"s_mul_i32 s45, s{S_W}, {7*KB}\ns_mul_i32 s44, s{S_JJ}, {7*28*KB}\ns_add_u32 s44, s44, s45\ns_add_u32 s44, s44, {WGU}")
    a(f"s_lshl_b32 s47, s{S_Q}, 2\ns_add_u32 s47, s47, s{S_W}\ns_min_u32 s47, s47, 13\ns_lshl_b32 s48, s47, 15\ns_add_u32 s48, s48, {WOF}")
    a(f"s_mul_i32 s50, s{S_TB}, {28*KB}\ns_lshl_b32 s51, s47, 11\ns_add_u32 s50, s50, s51\ns_add_u32 s50, s50, s{S_LB}")
    a(f"s_mul_i32 s51, s{S_JJ}, {7*128}\ns_add_u32 s51, s51, {CS+16*128}")
    def wo(i):
        def g():
            if i % 4 == 0: a(f"s_add_u32 s49, s48, {i*KB}")
            ld1(a, WO+4*i, 49, (i % 4)*KB, 'wo')
        return g
    def cs():
        a(f"s_mov_b32 m0, {L_CS}\ns_nop 0"); a.v(f"buffer_load_dwordx4 v0, {srd(WS)}, s51 offen lds", 'cs')
    pf = [wo(i) for i in range(32)] + [lambda i=i: ld1(a, RES+4*i, 50, XA + i*KB, 'res', 0, SC) for i in range(2)] + [cs]
    for t in range(3): pf += dma7(a, t, L_GU + t*28*KB, ('T', t))
    return pf
def main_loop(a, pf):
    a.wait(('kv', 0, 0))
    qk(a, 0, 0, 0, 0); qk(a, 0, 0, 0, 1)
    a("s_nop 10")
    pf = list(pf)
    for u in range(64):
        kb, h = u >> 2, u & 3
        sr_, pb = S + 16*(u & 1), P + 8*(u & 1)
        for q in range(4):
            if q == 0 and h == 3 and kb < 15: a.wait(('kv', kb+1, 0))
            if q == 2 and h == 1: a.wait(('kv', kb, 1))
            if q < 2:
                if u < 63: qk(a, (u+1) & 3, ((u+1) >> 2) & 3, (u+1) & 1, q)
            elif u: pv(a, (u-1) & 3, ((u-1) >> 2) & 3, (u-1) & 1, q-2, u <= 4)
            if q == 1 and h == 3 and kb + 4 < 16: kv_ld(a, kb+4, 0)
            if q == 2 and h == 1 and kb + 3 < 16: kv_ld(a, kb+3, 1)
            if q == 3 and pf: pf.pop(0)()
            for e in range(4): a(f"v_exp_f32 v{sr_+4*q+e}, v{sr_+4*q+e}")
            cv = [] if q == 0 else [2*(q-1), 2*(q-1)+1] + ([6, 7] if q == 3 else [])
            for c in cv: a(f"v_cvt_pk_bf16_f32 v{pb+c}, v{sr_+2*c}, v{sr_+2*c+1}")
    a("s_nop 0")
    pv(a, 3, 3, 1, 0); pv(a, 3, 3, 1, 1)
def rot(a, i, shift, mul, v, base=0):
    a(f"s_add_u32 s30, s{S_W}, {i}\ns_and_b32 s30, s30, 3\ns_mul_i32 s30, s30, {mul}\nv_add_u32 v{v}, s30, v{base}")
def max_pass(a):
    for h in range(4): a(f"v_mov_b32 v{P+h}, 0xff800000")
    a("s_mov_b32 s26, 0\ns_mov_b32 s28, 16")
    L = a.label('Lmax')
    a(f"{L}:")
    for i in range(2): a(f"buffer_load_dwordx4 {R(KVR+4*i,4)}, v0, {srd(SRD_KV)}, s26 offen offset:{i*KB}")
    a("s_add_u32 s26, s26, 4096\ns_waitcnt vmcnt(0)")
    for h in range(4):
        qk(a, h, 0, 0, 0); qk(a, h, 0, 0, 1); a("s_nop 12")
        for r in range(8): a(f"v_max3_f32 v{P+h}, v{S+2*r}, v{S+2*r+1}, v{P+h}")
    a(f"s_sub_u32 s28, s28, 1\ns_cmp_lg_u32 s28, 0\ns_cbranch_scc1 {L}")
    a(f"s_lshl_b32 s24, s{S_W}, 8\nv_add_u32 v6, s24, v13\nv_lshlrev_b32 v7, 2, v1")
    for h in range(4): rot(a, h, 0, KB, 5, 6); a(f"ds_write_b32 v5, v{P+h} offset:{L_Q}")
    a("s_waitcnt lgkmcnt(0)\ns_barrier")
    for h in range(4):
        rot(a, h, 0, KB, 5, 7)
        for i in range(8): a(f"ds_read_b32 v{S+i}, v5 offset:{L_Q+128*i}")
        a("s_waitcnt lgkmcnt(0)")
        for i in (1, 3, 5): a(f"v_max3_f32 v{S}, v{S+i}, v{S+i+1}, v{S}")
        a(f"v_max_f32 v{S}, v{S}, v{S+7}\nv_sub_f32 v8, 0, v{S}")
        a("v_and_b32 v9, 0xffff0000, v8\nv_sub_f32 v8, v8, v9\nv_and_b32 v10, 0xffff0000, v8\nv_sub_f32 v8, v8, v10")
        a(f"v_lshrrev_b32 v9, 16, v9\ns_mov_b32 exec_lo, 0\nv_or_b32 v{Q+8*h+6}, v9, v10\nv_lshrrev_b32 v{Q+8*h+7}, 16, v8\ns_mov_b32 exec_lo, -1")
    a("s_barrier")
def finish(a, retry):
    for i in range(1, 4): rot(a, i, 0, 12*KB, 4+i)
    rot(a, 0, 0, 12*KB, 8)
    for i in range(1, 4):
        if i == 3: a("s_nop 7")
        for q in range(4): a(f"ds_write_b128 v{4+i}, {R(O+16*i+4*q,4)} offset:{(4*(i-1)+q)*KB}")
    a("s_waitcnt lgkmcnt(0)\ns_barrier")
    for j in range(12): a(f"ds_read_b128 {vr(O+16+4*j,4)}, v8 offset:{j*KB}")
    a(f"s_lshl_b32 s24, s{S_TB}, 15\ns_lshl_b32 s25, s{S_Q}, 13\ns_add_u32 s24, s24, s25\ns_lshl_b32 s25, s{S_W}, 11\ns_add_u32 s24, s24, s25")
    a(f"s_add_u32 s24, s24, s{S_LB}\ns_add_u32 s24, s24, {OO}")
    for w in range(1, 4):
        a(f"s_waitcnt lgkmcnt({12-4*w})")
        for r in [12] + list(range(12)) + [13, 14, 15]: a(f"v_add_f32 v{O+r}, v{O+r}, v{O+16*w+r}")
        if w == 3: a(f"v_mov_b32 v6, v{O+12}\nv_mov_b32 v5, v{O+12}\nv_mov_b32 v8, 0\nv_mov_b32 v9, 0x21800000")
    a("v_permlane32_swap_b32 v6, v5\nv_mov_b32 v10, 0x5d800000\ns_nop 0\nv_rcp_f32 v7, v5")
    a(f"v_cmp_nge_f32 vcc, v5, v9\nv_cmp_nle_f32 s[30:31], v5, v10")
    for r in range(16): a(f"v_mul_f32 v{O+r}, v{O+r}, v7\nv_fmac_f32 v8, 0, v{O+r}")
    a(f"s_or_b64 s[30:31], s[30:31], vcc\nv_cmp_u_f32 vcc, v8, v8")
    for i in range(8): a(f"v_cvt_pk_bf16_f32 v{P+i}, v{O+2*i}, v{O+2*i+1}")
    a(f"s_or_b64 s[30:31], s[30:31], vcc\ns_mov_b32 exec_lo, 0\nv_mov_b32 v{P+6}, 0\nv_mov_b32 v{P+7}, 0\ns_mov_b32 exec_lo, -1")
    st1(a, P, 24, 0); st1(a, P+4, 24, KB)
    a(f"s_cmp_lg_u64 s[30:31], 0\ns_cselect_b32 s30, 1, 0\ns_andn2_b32 s30, s30, s29\nv_mov_b32 v7, s30\ns_lshl_b32 s30, s{S_W}, 2\ns_add_u32 s30, s30, {L_MISC}\nv_mov_b32 v8, s30")
    a(f"ds_write_b32 v8, v7\ns_waitcnt lgkmcnt(0)\ns_barrier\nv_mov_b32 v8, {L_MISC}\nds_read_b128 v[8:11], v8")
    a(f"s_waitcnt lgkmcnt(0)\nv_or3_b32 v8, v8, v9, v10\nv_or_b32 v8, v8, v11\ns_nop 0\nv_readfirstlane_b32 s30, v8\ns_nop 3\ns_cmp_lg_u32 s30, 0\ns_cbranch_scc1 {retry}")
def att_loads(a):
    a(f"s_mul_i32 s25, s{S_W}, {7*KB}\ns_mul_i32 s24, s{S_TB}, {28*KB}\ns_add_u32 s24, s24, s25\ns_add_u32 s24, s24, s{S_LB}")
    dman(a, 7, 24, 25, 'x', SC)
    a(f"s_mul_i32 s24, s{S_TB}, {14*256}\ns_add_u32 s24, s24, s{S_LB}\ns_add_u32 s24, s24, {SA}")
    ld_stats(a, 100, 24, 8, 'stat')
    a(f"s_lshl_b32 s25, s{S_Q}, 2\ns_add_u32 s25, s25, s{S_W}\ns_lshl_b32 s24, s25, 7\ns_add_u32 s24, s24, {CS}")
    ld_cs(a, 116, 24, 9, 'qcs')
    a(f"s_mul_i32 s24, s25, {28*KB}\ns_add_u32 s24, s24, {WQF}")
    ldn(a, 256, 28, 24, lambda i: ('wq', i))
def q_proj(a, before_barrier=None):
    B = 224
    for i in range(8): a(f"ds_read_b128 {vr(B+4*i,4)}, v0 offset:{i*KB}")
    a(f"v_mul_f32 v7, {fhex(QSCALE)}, v7")
    for i in range(28):
        if ('wq', i) in a.vm and i % 2 == 0: a.wait(('wq', i+1))
        a(f"s_waitcnt lgkmcnt({min(7, 27-i)})")
        a(f"{MF} {vr(S,16)}, {R(256+4*i,4)}, {vr(B+4*(i%8),4)}, {vr(S,16) if i else 0}")
        if i + 8 < 28: a(f"ds_read_b128 {vr(B+4*(i%8),4)}, v0 offset:{(i+8)*KB}")
    rot(a, 0, 0, 2*KB, 5)
    for i in range(1, 4): rot(a, i, 0, 2*KB, 132+i)
    a("s_nop 2")
    for r in range(16): a(f"v_fma_f32 v{S+r}, -v6, v{116+r}, v{S+r}\nv_mul_f32 v{S+r}, v7, v{S+r}")
    for i in range(8): a(f"v_cvt_pk_bf16_f32 v{P+i}, v{S+2*i}, v{S+2*i+1}")
    a(f"s_mov_b32 exec_lo, 0\nv_mov_b32 v{P+6}, 0\nv_mov_b32 v{P+7}, 0\ns_mov_b32 exec_lo, -1")
    a(f"ds_write_b128 v5, {vr(P,4)} offset:{L_Q}\nds_write_b128 v5, {vr(P+4,4)} offset:{L_Q+KB}")
    if before_barrier: before_barrier()
    a("s_waitcnt lgkmcnt(0)\ns_barrier")
    for i in range(4):
        for j in range(2): a(f"ds_read_b128 {vr(Q+8*i+4*j,4)}, v{132+i if i else 5} offset:{L_Q+j*KB}")
def pro0(a):
    att_loads(a); kv_srd(a); kv_first(a)
    a.wait('stat'); a("s_barrier")
    fin_stats(a, 100, 6, 7, 8)
    q_proj(a)
    a("s_waitcnt lgkmcnt(0)")
def pro1(a):
    a(f"s_lshr_b32 s24, s{S_JJ}, 3\ns_mul_i32 s24, s24, 28\ns_bfe_u32 s25, s{S_JJ}, 0x10002\ns_lshl_b32 s25, s25, 1\ns_add_u32 s24, s24, s25")
    a(f"s_mov_b32 s{S_MASK}, 0x3333333\ns_mov_b32 s{S_MASK+1}, 0\ns_lshl_b64 s[{S_MASK}:{S_MASK+1}], s[{S_MASK}:{S_MASK+1}], s24")
    await_(a); next_tag(a)
    stamp(a, 12)
    att_loads(a); kv_srd(a)
    a.wait('stat')
    fin_stats(a, 100, 6, 7, 8)
    nokv = a.label('Lnokv')
    a(f"s_cmp_lg_u32 s{S_Q}, 0\ns_cbranch_scc1 {nokv}\ns_mul_i32 s24, s{S_W}, {7*KB}\nv_add_u32 v8, s24, v0")
    for i in range(7): a(f"ds_read_b128 {vr(XK+4*i,4)}, v8 offset:{i*KB}")
    a(f"s_lshl_b32 s48, s{S_TB}, 12\ns_lshl_b32 s24, s{S_W}, 10\ns_add_u32 s48, s48, s24\ns_add_u32 s48, s48, s{S_LB}\ns_add_u32 s48, s48, {KVO}\ns_waitcnt lgkmcnt(0)")
    vm = list(a.vm)
    kv_core(a, lambda i: 256+224+4*i if i < 8 else 232+4*(i-8), 48)
    a(f"s_waitcnt vmcnt(0)\ns_barrier\ns_cmp_lg_u32 s{S_W}, 0\ns_cbranch_scc1 {nokv}\ns_lshl_b32 s24, s{S_TB}, 6\ns_add_u32 s24, s24, {GF2}")
    publish_global(a, 24, 0x40)
    stamp(a, 13)
    a(f"{nokv}:\ns_barrier")
    a.vm = vm
    def poll():
        sk = a.label('Lnp')
        a(f"s_cmp_lg_u32 s{S_W}, 0\ns_cbranch_scc1 {sk}")
        poll_global(a, GF2, 1, 0x40)
        a(f"{sk}:")
    q_proj(a, poll)
    kv_first(a)
    a("s_waitcnt lgkmcnt(0)")
    stamp(a, 14)
def oproj(a):
    a(f"s_lshr_b32 s24, s{S_JJ}, 2\ns_lshl_b32 s24, s24, 4\ns_mov_b32 s{S_MASK}, 0xffff\ns_mov_b32 s{S_MASK+1}, 0\ns_lshl_b64 s[{S_MASK}:{S_MASK+1}], s[{S_MASK}:{S_MASK+1}], s24")
    a(f"s_lshl_b32 s25, s{S_W}, 13\ns_lshl_b32 s24, s{S_TB}, 15\ns_add_u32 s24, s24, s25\ns_add_u32 s24, s24, s{S_LB}\ns_add_u32 s24, s24, {OO}")
    await_(a); next_tag(a)
    stamp(a, 6, 0)
    dman(a, 8, 24, 25, 'o', SC)
    a(f"s_mul_i32 s24, s{S_TB}, {14*256}\ns_lshl_b32 s25, s47, 8\ns_add_u32 s25, s25, s24\ns_add_u32 s25, s25, s{S_LB}\ns_add_u32 s25, s25, {SB}\ns_add_u32 s24, s50, {XB}")
    a.wait0(); a("s_barrier")
    idle, join = a.label('Lidle'), a.label('Ljoin')
    a(f"s_lshl_b32 s30, s{S_Q}, 2\ns_add_u32 s30, s30, s{S_W}\ns_cmp_ge_u32 s30, 14\ns_cbranch_scc1 {idle}")
    B, A = 48, 16
    for i in range(8): a(f"ds_read_b128 {vr(B+4*i,4)}, v0 offset:{i*KB}")
    for i in range(32):
        a(f"s_waitcnt lgkmcnt({min(7, 31-i)})")
        a(f"{MF} {vr(A,16)}, {R(WO+4*i,4)}, {vr(B+4*(i%8),4)}, {vr(A,16) if i else 0}")
        if i + 8 < 32: a(f"ds_read_b128 {vr(B+4*(i%8),4)}, v0 offset:{(i+8)*KB}")
    a("s_barrier\ns_nop 9")
    add_resid(a, A, RES, 32)
    store_x(a, A, RES, 32, 24, 25, 5)
    publish(a)
    a(f"s_branch {join}\n{idle}:\ns_barrier\n{join}:")
    stamp(a, 7, 0)
```

```python
from asmlib import *
import struct
KB = 1024
WQF = 0
WKF = WQF + 16*28*KB
WOF = WKF + 56*KB
WGU = WOF + 14*32*KB
WDF = WGU + 112*28*KB
CS  = WDF + 14*112*KB
ACT = CS + 17*KB
XA = 0; SA = XA + 64*28*KB; KVO = SA + 64*14*256; OO = KVO + 64*4*KB; XB = OO + 64*32*KB; SB = XB + 64*28*KB
HO = SB + 64*14*256; LSTR = HO + 64*112*KB
GF0 = ACT + 2*LSTR; GF1 = GF0 + 16*KB; GF2 = GF1 + 16*KB; FL = GF2 + 4*KB; EPOCH = FL + 8*KB
WS_END = EPOCH + KB
XF = [ACT+XA, ACT+XB, ACT+LSTR+XA, ACT+LSTR+XB]; KVF = [ACT+KVO, ACT+LSTR+KVO]; OF = [ACT+OO, ACT+LSTR+OO]; HF = [ACT+HO, ACT+LSTR+HO]
MF = "v_mfma_f32_32x32x16_bf16"
OOB = 0x40000000
LOG2E = 1.4426950408889634
QSCALE = (28 ** -0.5) * LOG2E
def fhex(x): return hex(struct.unpack('<I', struct.pack('<f', x))[0])
S_W, S_TB, S_Q, S_JJ, S_LB = 3, 4, 5, 6, 7
WS, SRD_A, SRD_B, SRD_KV = 8, 12, 16, 20
S_B, S_MODE, S_FB, S_FO, S_TAG, S_L, S_GTB, S_SPIN, S_DTP, S_DFP, S_MASK, S_G = 32, 33, 34, 35, 36, 37, 38, 39, 40, 41, 42, 44
SC = ' sc1'
L_Q, L_GU, L_CS, L_W, L_KVR, L_TR, L_MISC, LDS_SIZE = 48*KB, 56*KB, 140*KB, 56*KB, 112*KB, 144*KB, 148*KB, 152*KB

class A2(Asm):
    def __init__(self):
        super().__init__(); self.vm = []
    def v(self, s, tag=None):
        self(s); self.vm.append(tag)
    def n_after(self, tag):
        idx = max(i for i, t in enumerate(self.vm) if t == tag)
        return len(self.vm) - 1 - idx
    def wait(self, tag, extra=''):
        n = self.n_after(tag)
        self(f"s_waitcnt vmcnt({min(n, 63)}){extra}")
    def wait0(self):
        self("s_waitcnt vmcnt(0)"); self.vm = []
def srd(b): return f"s[{b}:{b+3}]"
def ld1(a, dst, soff, imm, tag, voff=0, fl='', s=WS):
    a.v(f"buffer_load_dwordx4 {R(dst,4)}, v{voff}, {srd(s)}, s{soff} offen offset:{imm}{fl}", tag)
def ldn(a, dst, n, soff, tag, fl='', i0=0):
    for i in range(i0, i0+n):
        if i and i % 4 == 0: a(f"s_add_u32 s{soff}, s{soff}, 4096")
        ld1(a, dst + 4*i, soff, (i % 4)*KB, tag(i) if callable(tag) else tag, 0, fl)
def dman(a, n, soff, sm0, tag, fl='', i0=0):
    for i in range(i0, i0+n):
        if i % 4 == 0:
            if i: a(f"s_add_u32 s{soff}, s{soff}, 4096\ns_add_u32 s{sm0}, s{sm0}, 4096")
            a(f"s_mov_b32 m0, s{sm0}\ns_nop 0")
        a.v(f"buffer_load_dwordx4 v0, {srd(WS)}, s{soff} offen offset:{(i%4)*KB}{fl} lds", tag)
def st1(a, src, soff, imm, tag='st', voff=0, fl=''):
    a.v(f"buffer_store_dwordx4 {R(src,4)}, v{voff}, {srd(WS)}, s{soff} offen offset:{imm}{fl}", tag)
def ld_stats(a, dst, soff, vtmp, tag, fl=SC):
    a(f"v_mul_u32_u24 v{vtmp}, {7*256}, v2\nv_lshl_add_u32 v{vtmp}, v1, 3, v{vtmp}")
    for i in range(7):
        a.v(f"buffer_load_dwordx2 {vr(dst+2*i,2)}, v{vtmp}, {srd(WS)}, s{soff} offen offset:{i*256}{fl}", tag)
def stats_tail(mu, rs):
    return [f"v_mul_f32 v{mu}, {fhex(1/448)}, v{mu}", f"v_mul_f32 v{rs}, {fhex(1/448)}, v{rs}",
            f"v_fma_f32 v{rs}, -v{mu}, v{mu}, v{rs}", f"v_max_f32 v{rs}, 0, v{rs}", f"v_add_f32 v{rs}, {fhex(1e-5)}, v{rs}",
            f"v_rsq_f32 v{rs}, v{rs}", "s_nop 0"]
def fin_stats_list(src, mu, rs, t):
    o = []
    for i in (1, 3, 5): o += [f"v_add_f32 v{src+2*i}, v{src+2*i}, v{src+2*i+2}", f"v_add_f32 v{src+2*i+1}, v{src+2*i+1}, v{src+2*i+3}"]
    o += [f"v_add_f32 v{src}, v{src}, v{src+2}", f"v_add_f32 v{src+1}, v{src+1}, v{src+3}",
          f"v_add_f32 v{src+6}, v{src+6}, v{src+10}", f"v_add_f32 v{src+7}, v{src+7}, v{src+11}",
          f"v_add_f32 v{mu}, v{src}, v{src+6}", f"v_add_f32 v{rs}, v{src+1}, v{src+7}",
          f"v_mov_b32 v{t}, v{mu}", f"v_mov_b32 v{t+1}, v{rs}", "s_nop 1",
          f"v_permlane32_swap_b32 v{t}, v{mu}", f"v_permlane32_swap_b32 v{t+1}, v{rs}", "s_nop 1",
          f"v_add_f32 v{mu}, v{mu}, v{t}", f"v_add_f32 v{rs}, v{rs}, v{t+1}"]
    return o + stats_tail(mu, rs)
def fin_stats(a, src, mu, rs, t):
    for i in fin_stats_list(src, mu, rs, t): a(i)
def ld_cs(a, dst, soff, vtmp, tag):
    a(f"v_lshlrev_b32 v{vtmp}, 4, v2")
    for q in range(4): ld1(a, dst+4*q, soff, 32*q, tag, vtmp)
def add_resid(a, acc, res, t):
    for i in range(8):
        a(f"v_lshlrev_b32 v{t}, 16, v{res+i}\nv_and_b32 v{t+1}, 0xffff0000, v{res+i}")
        a(f"v_add_f32 v{acc+2*i}, v{acc+2*i}, v{t}\nv_add_f32 v{acc+2*i+1}, v{acc+2*i+1}, v{t+1}")
    for i in range(8): a(f"v_cvt_pk_bf16_f32 v{res+i}, v{acc+2*i}, v{acc+2*i+1}")
def store_x(a, acc, res, t, s_x, s_st, vtmp):
    st1(a, res, s_x, 0); st1(a, res+4, s_x, KB)
    a(f"v_add_f32 v{t}, v{acc}, v{acc+1}\nv_mul_f32 v{t+1}, v{acc}, v{acc}\nv_add_f32 v{t+2}, v{acc+2}, v{acc+3}\nv_mul_f32 v{t+3}, v{acc+1}, v{acc+1}")
    a(f"v_fmac_f32 v{t+1}, v{acc+2}, v{acc+2}\nv_fmac_f32 v{t+3}, v{acc+3}, v{acc+3}")
    for i in range(4, 16, 2):
        a(f"v_add_f32 v{t}, v{t}, v{acc+i}\nv_fmac_f32 v{t+1}, v{acc+i}, v{acc+i}\nv_add_f32 v{t+2}, v{t+2}, v{acc+i+1}\nv_fmac_f32 v{t+3}, v{acc+i+1}, v{acc+i+1}")
    a(f"v_add_f32 v{t}, v{t}, v{t+2}\nv_add_f32 v{t+1}, v{t+1}, v{t+3}\nv_lshlrev_b32 v{vtmp}, 3, v1")
    a(f"v_mov_b32 v{t+2}, v{t}\nv_mov_b32 v{t+3}, v{t+1}\ns_nop 1")
    a(f"v_permlane32_swap_b32 v{t+2}, v{t}\nv_permlane32_swap_b32 v{t+3}, v{t+1}\ns_nop 1")
    a(f"v_add_f32 v{t}, v{t}, v{t+2}\nv_add_f32 v{t+1}, v{t+1}, v{t+3}\ns_mov_b32 exec_hi, 0")
    a.v(f"buffer_store_dwordx2 {vr(t,2)}, v{vtmp}, {srd(WS)}, s{s_st} offen", 'st')
    a("s_mov_b32 exec_hi, -1")
def store_out(a, res, s_out, vtmp):
    a(f"v_mul_u32_u24 v{vtmp}, 896, v1\nv_lshl_add_u32 v{vtmp}, v2, 4, v{vtmp}")
    a(f"v_permlane32_swap_b32 v{res}, v{res+2}\nv_permlane32_swap_b32 v{res+1}, v{res+3}")
    a(f"v_permlane32_swap_b32 v{res+4}, v{res+6}\nv_permlane32_swap_b32 v{res+5}, v{res+7}")
    a.v(f"buffer_store_dwordx4 {vr(res,4)}, v{vtmp}, {srd(SRD_A)}, s{s_out} offen")
    a.v(f"buffer_store_dwordx4 {vr(res+4,4)}, v{vtmp}, {srd(SRD_A)}, s{s_out} offen offset:32")

def publish(a, tag='st'):
    slow, done = a.label('Lps'), a.label('Lpd')
    if tag: a.wait(tag)
    a(f"v_mov_b32 v14, s{S_TAG}\nv_mov_b32 v15, 0\ns_cmp_lg_u32 s{S_MODE}, 0\ns_cbranch_scc1 {slow}\ns_mov_b64 exec, 1")
    a.v(f"buffer_store_dword v14, v15, {srd(WS)}, s{S_FO} offen", 'flag')
    a(f"s_branch {done}\n{slow}:\ns_waitcnt vmcnt(0)\nbuffer_wbl2 sc1\ns_waitcnt vmcnt(0)\ns_mov_b64 exec, 1")
    a(f"buffer_store_dword v14, v15, {srd(WS)}, s{S_FO} offen sc1\n{done}:\ns_mov_b64 exec, -1")
SPIN_MAX = 1 << 20
def await_(a):
    L, X, F = a.label('Lw'), a.label('Lwx'), a.label('Lwf')
    a(f"s_mov_b64 exec, s[{S_MASK}:{S_MASK+1}]\n{L}:\ns_add_u32 s{S_SPIN}, s{S_SPIN}, 1\ns_cmp_gt_u32 s{S_SPIN}, {SPIN_MAX}\ns_cbranch_scc1 {X}")
    a(f"buffer_load_dword v14, v13, {srd(WS)}, s{S_FB} offen sc1\ns_waitcnt vmcnt(0)")
    a(f"v_subrev_u32 v14, s{S_TAG}, v14\nv_cmp_lt_u32 vcc, 15, v14\ns_cbranch_vccnz {L}")
    a(f"{X}:\ns_mov_b64 exec, -1\ns_cmp_eq_u32 s{S_MODE}, 0\ns_cbranch_scc1 {F}\nbuffer_inv sc1\ns_waitcnt vmcnt(0)\n{F}:")
    a.vm = []
def next_tag(a): a(f"s_add_u32 s{S_TAG}, s{S_TAG}, 1")
def poll_global(a, base, nreg, tagoff, keep=None):
    L, X = a.label('Lg'), a.label('Lgx')
    a(f"v_lshlrev_b32 v12, 2, v0\ns_add_u32 s30, s{S_B}, {tagoff}")
    a(f"{L}:\ns_add_u32 s{S_SPIN}, s{S_SPIN}, 1\ns_cmp_gt_u32 s{S_SPIN}, {SPIN_MAX}\ns_cbranch_scc1 {X}\ns_mov_b32 s31, {base}")
    for i in range(nreg):
        if i: a("s_add_u32 s31, s31, 4096")
        a(f"buffer_load_dword v{8+i}, v12, {srd(WS)}, s31 offen sc1")
    a("s_waitcnt vmcnt(0)")
    for i in range(nreg): a(f"v_subrev_u32 v{8+i}, s30, v{8+i}")
    if nreg == 4: a("v_max3_u32 v14, v8, v9, v10\nv_max_u32 v14, v14, v11")
    a(f"v_cmp_lt_u32 vcc, 15, v{14 if nreg == 4 else 8}\ns_cbranch_vccnz {L}\n{X}:")
    a.vm = []
def publish_global(a, soff, tagoff):
    a(f"s_add_u32 s30, s{S_B}, {tagoff}\nv_mov_b32 v14, s30\nv_mov_b32 v15, 0\ns_mov_b64 exec, 1")
    a.v(f"buffer_store_dword v14, v15, {srd(WS)}, s{soff} offen sc1", 'flag')
    a("s_mov_b64 exec, -1")

STAMPS = WS_END
NST = 20
STAMP_ON = [False]
def stamp(a, i, l=None):
    if not STAMP_ON[0]: return
    if l is None: a(f"s_memrealtime s[{60+2*i}:{61+2*i}]"); return
    sk = a.label('Lst')
    a(f"s_cmp_lg_u32 s{S_L}, {l}\ns_cbranch_scc1 {sk}\ns_memrealtime s[{60+2*i}:{61+2*i}]\n{sk}:")
def stamp_head(a):
    if STAMP_ON[0]:
        for i in range(2*NST): a(f"s_mov_b32 s{60+i}, 0")
        a("s_memrealtime s[60:61]\ns_mov_b32 s58, s2")
def stamp_tail(a):
    if not STAMP_ON[0]: return
    a(f"s_waitcnt vmcnt(0) lgkmcnt(0)\ns_memrealtime s[{60+2*NST-2}:{60+2*NST-1}]\ns_waitcnt lgkmcnt(0)\ns_mov_b64 exec, 1")
    a(f"s_lshl_b32 s58, s58, 2\ns_add_u32 s58, s58, s{S_W}\ns_mul_i32 s58, s58, {NST*4}\ns_add_u32 s58, s58, {STAMPS}\nv_mov_b32 v1, s58")
    for i in range(NST): a(f"v_mov_b32 v2, s{60+2*i}\nglobal_store_dword v1, v2, s[{WS}:{WS+1}] offset:{4*i}")
```

```python
from p_common import *
from p_att import dma7
X = 116
SLOT = [56*KB, 84*KB, 112*KB, 0, 28*KB, 56*KB, 84*KB]
def gu_epi(acc, C, T, MU, RS, NL):
    o = []
    for r in range(16): o.append(f"v_fma_f32 v{acc+r}, -v{MU}, v{C+r}, v{acc+r}")
    for r in range(8): o.append(f"v_mul_f32 v{acc+r}, v{NL}, v{acc+r}")
    for r in range(8): o += [f"v_exp_f32 v{acc+r}, v{acc+r}", f"v_mul_f32 v{acc+8+r}, v{RS}, v{acc+8+r}"]
    for r in range(8): o.append(f"v_add_f32 v{acc+r}, 1.0, v{acc+r}")
    for r in range(8): o.append(f"v_rcp_f32 v{acc+r}, v{acc+r}")
    for r in range(8): o.append(f"v_mul_f32 v{acc+8+r}, v{acc+r}, v{acc+8+r}")
    for i in range(4): o.append(f"v_cvt_pk_bf16_f32 v{T+i}, v{acc+8+2*i}, v{acc+9+2*i}")
    return o
def gu(a):
    ACC, A, C, T, D = 16, 48, 80, 96, 6
    MU, RS, NL = 6, 7, 9
    a(f"s_lshl_b32 s24, s{S_W}, 4\ns_mov_b32 s{S_MASK}, 0x3fff\ns_mov_b32 s{S_MASK+1}, 0\ns_lshl_b64 s[{S_MASK}:{S_MASK+1}], s[{S_MASK}:{S_MASK+1}], s24")
    a(f"s_add_u32 s27, s{S_GTB}, s{S_W}\ns_mul_i32 s24, s27, {28*KB}\ns_add_u32 s24, s24, s{S_LB}\ns_add_u32 s24, s24, {XB}")
    a(f"s_mul_i32 s25, s27, {14*256}\ns_add_u32 s25, s25, s{S_LB}\ns_add_u32 s25, s25, {SB}")
    a(f"s_mul_i32 s27, s27, {112*KB}\ns_mul_i32 s26, s{S_JJ}, {7*KB}\ns_add_u32 s27, s27, s26\ns_add_u32 s27, s27, s{S_LB}\ns_add_u32 s27, s27, {HO}")
    a(f"s_mul_i32 s50, s{S_DFP}, {224*KB}\ns_mul_i32 s26, s{S_W}, {28*KB}\ns_add_u32 s50, s50, s26\ns_add_u32 s50, s50, {WDF}")
    a(f"s_mul_i32 s53, s{S_W}, {14*KB}\ns_add_u32 s53, s53, {WKF}")
    a(f"v_add_u32 v3, 0x10000, v0\nv_add_u32 v4, 0x20000, v0\nv_lshlrev_b32 v5, 4, v2\nv_add_u32 v5, 0x20000, v5")
    seq = [(t, k) for t in range(7) for k in range(28)]
    def rd(n):
        t, k = seq[n]
        if k == 0 and t >= 2:
            if t >= 3: a.wait(('T', t))
            a("s_barrier")
            if t < 4:
                for f in dma7(a, t+3, SLOT[t+3], ('T', t+3)): f()
        off = SLOT[t] + k*KB
        a(f"ds_read_b128 {vr(A+4*(n%8),4)}, v{(0, 3, 4)[off >> 16]} offset:{off % 65536}")
    for n in range(D): rd(n)
    await_(a); next_tag(a)
    stamp(a, 8, 0); stamp(a, 16, 1)
    ldn(a, X, 28, 24, lambda i: ('x', i), SC)
    ld_stats(a, 100, 25, 8, 'stat')
    for t in (3, 4):
        for f in dma7(a, t, SLOT[t], ('T', t)): f()
    def wd(k, fi):
        def g():
            if k % 4 == 0: a(f"s_add_u32 s{51+fi}, s50, {k*KB + fi*112*KB}")
            ld1(a, 256 + 8*k + 4*fi, 51+fi, (k % 4)*KB, 'wd')
        return g
    def wkv(i):
        def g():
            if i % 4 == 0: a(f"s_add_u32 s51, s53, {i*KB}")
            ld1(a, 256+224+4*i if i < 8 else 232+4*(i-8), 51, (i % 4)*KB, 'wkv')
        return g
    pf = [wd(k, fi) for k in range(28) for fi in range(2)] + [wkv(i) for i in range(14)]
    epi = []
    cs_at = -100
    for n, (t, k) in enumerate(seq):
        if t == 0 and k % 2 == 0: a.wait(('x', k+1))
        a(f"s_waitcnt lgkmcnt({min(D-1, len(seq)-1-n) + (4 if 1 <= n - cs_at <= D else 0)})")
        acc = ACC + 16*(t & 1)
        a(f"{MF} {vr(acc,16)}, {vr(A+4*(n%8),4)}, {R(X+4*k,4)}, {vr(acc,16) if k else 0}")
        if t == 0 and k == 27:
            a.wait('stat')
            fin_stats(a, 100, MU, RS, 10)
            a(f"v_mul_f32 v{NL}, {fhex(-LOG2E)}, v{RS}")
        if n + D < len(seq): rd(n + D)
        if t >= 1 and n % 2 == 0 and pf: pf.pop(0)()
        if k == 0 and t > 0:
            epi = gu_epi(ACC + 16*((t-1) & 1), C, T, MU, RS, NL)
        if k >= D-1 and epi:
            for _ in range(3):
                if epi: a(epi.pop(0))
            if not epi:
                assert k == 27
                st1(a, T, 27, 0); a("s_add_u32 s27, s27, 1024")
        if k == 26:
            for q in range(4): a(f"ds_read_b128 {vr(C+4*q,4)}, v5 offset:{L_CS - 131072 + t*128 + 32*q}")
            cs_at = n
    assert not pf
    a("s_waitcnt lgkmcnt(0)\ns_nop 10")
    for i in gu_epi(ACC, C, T, MU, RS, NL): a(i)
    st1(a, T, 27, 0)
    publish(a)
    stamp(a, 9, 0)
def down(a, pro1_label, end):
    RING, DEP, ACC, RES = 96, 17, 16, 80
    skip, last = a.label('Lskip'), a.label('Llast')
    next_tag(a)
    a(f"s_cmp_ge_u32 s{S_JJ}, 14\ns_cbranch_scc1 {skip}\ns_sub_u32 s{S_TAG}, s{S_TAG}, 1")
    a(f"s_lshl_b32 s24, s{S_W}, 4\ns_lshl_b32 s25, s{S_DTP}, 1\ns_add_u32 s24, s24, s25\ns_mov_b32 s{S_MASK}, 0x3333\ns_mov_b32 s{S_MASK+1}, 0")
    a(f"s_lshl_b64 s[{S_MASK}:{S_MASK+1}], s[{S_MASK}:{S_MASK+1}], s24\ns_add_u32 s44, s{S_GTB}, s25")
    a(f"s_lshr_b32 s45, s{S_W}, 1\ns_add_u32 s45, s45, s44\ns_and_b32 s46, s{S_W}, 1\ns_lshl_b32 s47, s{S_DFP}, 1\ns_add_u32 s46, s46, s47")
    a(f"s_mul_i32 s47, s45, {28*KB}\ns_lshl_b32 s48, s46, 11\ns_add_u32 s47, s47, s48\ns_add_u32 s47, s47, s{S_LB}\ns_add_u32 s24, s47, {XB}")
    ldn(a, RES, 2, 24, 'res', SC)
    a(f"s_mul_i32 s24, s44, {112*KB}\ns_mul_i32 s25, s{S_W}, {28*KB}\ns_add_u32 s24, s24, s25\ns_add_u32 s24, s24, s{S_LB}\ns_add_u32 s24, s24, {HO}\ns_add_u32 s25, s24, {112*KB}")
    await_(a); next_tag(a)
    stamp(a, 10, 0); stamp(a, 17, 1)
    def ld(k):
        if k and k % 4 == 0: a("s_add_u32 s24, s24, 4096\ns_add_u32 s25, s25, 4096")
        for ti in range(2): ld1(a, RING + 8*(k % DEP) + 4*ti, 24+ti, (k % 4)*KB, (k, ti), 0, SC)
    for k in range(DEP): ld(k)
    for k in range(28):
        for ti in range(2):
            a.wait((k, ti))
            for fi in range(2):
                acc = ACC + 16*(2*ti+fi)
                a(f"{MF} {vr(acc,16)}, {R(256+8*k+4*fi,4)}, {vr(RING+8*(k%DEP)+4*ti,4)}, {vr(acc,16) if k else 0}")
        if k + DEP < 28: ld(k + DEP)
    a(f"s_lshl_b32 s24, s{S_W}, 14\nv_add_u32 v5, s24, v0\ns_lshl_b32 s24, s{S_W}, 12\nv_add_u32 v6, s24, v0\ns_nop 7")
    for i in range(16): a(f"ds_write_b128 v5, {vr(ACC+4*i,4)} offset:{i*KB}")
    a("s_waitcnt lgkmcnt(0)\ns_barrier")
    for w in range(4):
        for q in range(4): a(f"ds_read_b128 {vr(ACC+16*w+4*q,4)}, v6 offset:{w*16*KB+q*KB}")
    a(f"s_add_u32 s24, s47, {LSTR+XA}\ns_mul_i32 s25, s45, {14*256}\ns_lshl_b32 s48, s46, 8\ns_add_u32 s25, s25, s48\ns_add_u32 s25, s25, s{S_LB}\ns_add_u32 s25, s25, {LSTR+SA}")
    for w in range(1, 4):
        a(f"s_waitcnt lgkmcnt({12-4*w})")
        for r in range(16): a(f"v_add_f32 v{ACC+r}, v{ACC+r}, v{ACC+16*w+r}")
    add_resid(a, ACC, RES, 32)
    a(f"s_cmp_lg_u32 s{S_L}, 0\ns_cbranch_scc1 {last}")
    store_x(a, ACC, RES, 32, 24, 25, 5)
    publish(a)
    stamp(a, 11)
    a(f"s_barrier\n{skip}:\ns_cmp_lg_u32 s{S_L}, 0\ns_cbranch_scc1 {end}")
    a(f"s_mov_b32 s{S_L}, 1\ns_add_u32 s{S_LB}, s{S_LB}, {LSTR}\ns_branch {pro1_label}")
    a(f"{last}:\ns_mul_i32 s24, s45, {32*896}\ns_lshl_b32 s25, s46, 6\ns_add_u32 s24, s24, s25")
    store_out(a, RES, 24, 5)
    a(f"s_branch {end}")
```

```python
from p_common import *
def load_srd(a, off, nb, s=SRD_A):
    a(f"s_load_dwordx2 s[{s}:{s+1}], s[0:1], {off}\ns_mov_b32 s{s+2}, {nb}\ns_mov_b32 s{s+3}, 0x20000")
def xhalf(a, v, t):
    a(f"v_mov_b32 v{t}, v{v}\ns_nop 1\nv_permlane32_swap_b32 v{t}, v{v}\ns_nop 1\nv_add_f32 v{v}, v{v}, v{t}")
def tr_addr(a, v, rowb, sbase):
    a(f"v_bfe_u32 v8, v1, 2, 2\nv_lshl_add_u32 v8, v2, 2, v8\nv_mul_u32_u24 v{v}, {rowb}, v8\nv_lshrrev_b32 v8, 4, v1\nv_lshl_add_u32 v{v}, v8, 5, v{v}")
    a(f"v_and_b32 v8, 3, v1\nv_lshl_add_u32 v{v}, v8, 3, v{v}\nv_add_u32 v{v}, s{sbase}, v{v}")
PK = 16
def unit(a, rowb, offs, dsts, v_dst, cs=None, zero_odd=False):
    n = len(offs)
    a(f"v_lshrrev_b32 v4, 6, v0\nv_mul_u32_u24 v4, {rowb}, v4\nv_and_b32 v8, 48, v0\nv_add_u32 v4, v4, v8\ns_lshl_b32 s47, s{S_W}, 14\ns_waitcnt lgkmcnt(0)")
    for i in range(n):
        a(f"s_add_u32 s46, s44, {offs[i]}\ns_add_u32 m0, s47, {i*KB}\ns_nop 0")
        a.v(f"buffer_load_dwordx4 v4, {srd(SRD_A)}, s46 offen lds", i)
    tr_addr(a, 9, 64, 47)
    if cs: a("v_mov_b32 v10, 0\nv_mov_b32 v11, 0\nv_mov_b32 v12, 0x3f803f80")
    for i in range(n + 1):
        if i < n:
            a.wait(i)
            a(f"ds_read_b64_tr_b16 {vr(PK+4*i,2)}, v9 offset:{i*KB}\nds_read_b64_tr_b16 {vr(PK+4*i+2,2)}, v9 offset:{i*KB+512}")
        if i:
            j = i - 1
            a(f"s_add_u32 s46, s45, {dsts[j]}\ns_waitcnt lgkmcnt({2 if i < n else 0})")
            if zero_odd and j & 1: a(f"s_mov_b32 exec_lo, 0\nv_mov_b32 v{PK+4*j+2}, 0\nv_mov_b32 v{PK+4*j+3}, 0\ns_mov_b32 exec_lo, -1")
            st1(a, PK+4*j, 46, 0, 'st', v_dst, SC)
            if cs:
                for d in range(4): a(f"v_dot2c_f32_bf16 v{10+(d&1)}, v{PK+4*j+d}, v12")
    if cs:
        a("s_nop 2\nv_add_f32 v10, v10, v11"); xhalf(a, 10, 11)
        a(f"s_lshl_b32 s30, s{S_W}, 7\nv_lshl_add_u32 v11, v1, 2, s30\nv_add_u32 v11, {L_MISC}, v11\nds_write_b32 v11, v10\ns_waitcnt lgkmcnt(0)\ns_barrier")
        a(f"v_lshlrev_b32 v11, 2, v1\nv_add_u32 v11, {L_MISC}, v11\nds_read2_b32 v[8:9], v11 offset1:32\nds_read2_b32 v[10:11], v11 offset0:64 offset1:96")
        a("s_waitcnt lgkmcnt(0)\nv_add_f32 v8, v8, v9\nv_add_f32 v10, v10, v11\nv_add_f32 v10, v10, v8")
        skip = a.label('Lcs')
        a(f"s_cmp_lg_u32 s{S_W}, 0\ns_cbranch_scc1 {skip}\ns_mov_b32 exec_hi, 0")
        a(f"buffer_store_dword v10, v{cs}, {srd(WS)}, s48 offen sc1\ns_mov_b32 exec_hi, -1\n{skip}:")
XK, AK, AV = 16, 48, 64
def kv_core(a, wkv, s_dst):
    a("v_mul_f32 v8, v6, v7\nv_sub_f32 v8, 0, v8")
    for i in range(7):
        for d in range(4):
            r = XK + 4*i + d
            a(f"v_lshlrev_b32 v9, 16, v{r}\nv_and_b32 v10, 0xffff0000, v{r}\nv_fma_f32 v9, v9, v7, v8\nv_fma_f32 v10, v10, v7, v8\nv_cvt_pk_bf16_f32 v{r}, v9, v10")
        a("s_nop 1")
        a(f"{MF} {vr(AK,16)}, {R(wkv(i),4)}, {vr(XK+4*i,4)}, {vr(AK,16) if i else 0}")
        a(f"{MF} {vr(AV,16)}, {vr(XK+4*i,4)}, {R(wkv(7+i),4)}, {vr(AV,16) if i else 0}")
    a(f"s_lshl_b32 s30, s{S_W}, 13\ns_add_u32 s30, s30, {L_GU}\nv_add_u32 v8, s30, v0\ns_lshl_b32 s30, s{S_W}, 11\ns_add_u32 s30, s30, {L_GU}\nv_add_u32 v9, s30, v0")
    a(f"v_mov_b32 v10, 1.0\nv_cmp_eq_u32 vcc, 28, v1\ns_cmp_ge_u32 s{S_W}, 2\ns_cselect_b32 s30, 0, 1.0\nv_mov_b32 v11, s30\nv_cndmask_b32 v10, v11, v10, vcc")
    a(f"s_cselect_b32 s44, 0xf0000000, 0\ns_mov_b32 s45, s44\ns_mov_b32 s46, s44\ns_cmp_eq_u32 s{S_W}, 1\ns_cselect_b32 s47, -1, s44\ns_nop 4")
    for q in range(8): a(f"ds_write_b128 v8, {vr(AK+4*q,4)} offset:{q*KB}")
    a("s_waitcnt lgkmcnt(0)\ns_barrier")
    for w in range(4):
        for q in range(2): a(f"ds_read_b128 {vr(16+8*w+4*q,4)}, v9 offset:{w*8*KB+q*KB}")
    for w in range(1, 4):
        a(f"s_waitcnt lgkmcnt({6-2*w})")
        for r in range(8): a(f"v_add_f32 v{16+r}, v{16+r}, v{16+8*w+r}")
    for r in range(8): a(f"v_cndmask_b32 v{16+r}, v{16+r}, v10, s[{44+2*(r>>2)}:{45+2*(r>>2)}]")
    for i in range(4): a(f"v_cvt_pk_bf16_f32 v{24+i}, v{16+2*i}, v{17+2*i}")
    st1(a, 24, s_dst, 0, 'st', 0, SC)
def prep(a, done):
    Lup, Lq, Lo, Ld, Lx = [a.label('Lprep') for _ in range(5)]
    for lim, lab in ((192, Lx), (191, done), (135, Ld), (128, Lo), (112, Lq), (56, Lup)):
        a(f"s_cmp_ge_u32 s2, {lim}\ns_cbranch_scc1 {lab}")
    vm0 = list(a.vm)
    Lgu = a.label('Lprep')
    load_srd(a, 48, 448*3584); a(f"s_mov_b32 s49, s2\ns_mov_b32 s50, 0\ns_branch {Lgu}\n{Lup}:")
    load_srd(a, 56, 448*3584); a(f"s_sub_u32 s49, s2, 56\ns_mov_b32 s50, 64\n{Lgu}:")
    a(f"s_mul_i32 s44, s{S_W}, {7*16*3584}\ns_lshl_b32 s45, s49, 6\ns_add_u32 s44, s44, s45")
    a(f"s_mul_i32 s45, s49, {2*28*KB}\ns_mul_i32 s46, s{S_W}, {7*KB}\ns_add_u32 s45, s45, s46\ns_add_u32 s45, s45, {WGU}")
    a(f"v_lshrrev_b32 v6, 4, v1\nv_and_b32 v7, 15, v1\nv_mul_u32_u24 v5, {28*KB}, v6\nv_lshl_add_u32 v5, v2, 9, v5\nv_lshl_add_u32 v5, v7, 4, v5")
    a(f"v_lshlrev_b32 v6, 7, v6\nv_lshl_add_u32 v6, v7, 2, v6\nv_add_u32 v6, s50, v6\ns_lshl_b32 s50, s50, 2\nv_add_u32 v5, s50, v5")
    a(f"s_lshl_b32 s48, s49, 8\ns_add_u32 s48, s48, {CS + 16*128}")
    unit(a, 3584, [16*3584*i for i in range(7)], [KB*i for i in range(7)], 5, 6); a(f"s_branch {done}")
    a.vm = list(vm0)
    a(f"{Lq}:\ns_sub_u32 s49, s2, 112"); load_srd(a, 8, 448*896)
    a(f"s_mul_i32 s44, s{S_W}, {7*16*896}\ns_mul_i32 s45, s49, 56\ns_add_u32 s44, s44, s45")
    a(f"s_mul_i32 s45, s49, {28*KB}\ns_mul_i32 s46, s{S_W}, {7*KB}\ns_add_u32 s45, s45, s46\ns_add_u32 s45, s45, {WQF}")
    a(f"v_lshlrev_b32 v6, 2, v1\ns_lshl_b32 s48, s49, 7\ns_add_u32 s48, s48, {CS}")
    unit(a, 896, [16*896*i for i in range(7)], [KB*i for i in range(7)], 0, 6); a(f"s_branch {done}")
    a.vm = list(vm0)
    a(f"{Lo}:\ns_sub_u32 s49, s2, 128"); load_srd(a, 32, 448*896)
    a(f"s_mul_i32 s44, s{S_W}, {4*28*896}\ns_lshl_b32 s45, s49, 7\ns_add_u32 s44, s44, s45")
    a(f"s_lshl_b32 s45, s49, 16\ns_lshl_b32 s46, s{S_W}, 13\ns_add_u32 s45, s45, s46\ns_add_u32 s45, s45, {WOF}")
    unit(a, 896, [(28*((i >> 1) & 3) + 16*(i & 1))*896 + 64*(i >> 3) for i in range(16)], [(i >> 3)*32*KB + (i & 7)*KB for i in range(16)], 0, None, True)
    a(f"s_branch {done}")
    a.vm = list(vm0)
    a(f"{Ld}:\ns_sub_u32 s49, s2, 135"); load_srd(a, 64, 1792*896)
    a(f"s_lshr_b32 s50, s49, 1\ns_mul_i32 s50, s50, 9363\ns_lshr_b32 s50, s50, 16\ns_mul_i32 s51, s50, 14\ns_sub_u32 s51, s49, s51")
    a(f"s_lshl_b32 s50, s50, 2\ns_add_u32 s50, s50, s{S_W}\ns_mul_i32 s44, s50, {7*16*896}\ns_lshl_b32 s45, s51, 6\ns_add_u32 s44, s44, s45")
    a(f"s_mul_i32 s45, s51, {112*KB}\ns_mul_i32 s46, s50, {7*KB}\ns_add_u32 s45, s45, s46\ns_add_u32 s45, s45, {WDF}")
    unit(a, 896, [16*896*i for i in range(7)], [KB*i for i in range(7)], 0); a(f"s_branch {done}")
    a.vm = list(vm0)
    a(f"{Lx}:\ns_sub_u32 s49, s2, 192"); load_srd(a, 0, 2048*896); load_srd(a, 16, 448*56, SRD_B); load_srd(a, 24, 448*56, SRD_KV)
    a(f"v_mul_u32_u24 v4, 896, v1\nv_lshl_add_u32 v4, v2, 4, v4\ns_mul_i32 s44, s49, {32*896}\ns_mul_i32 s45, s{S_W}, 224\ns_add_u32 s44, s44, s45")
    a(f"s_mul_i32 s45, s{S_W}, {7*896}\ns_mul_i32 s47, s{S_W}, {14*KB}\ns_waitcnt lgkmcnt(0)")
    for i in range(7): ld1(a, XK+4*i, 44, 32*i, 'x', 4, '', SRD_A)
    for m, s in enumerate((SRD_B, SRD_KV)):
        for i in range(7):
            if i % 4 == 0: a(f"s_add_u32 s46, s45, {i*KB}\ns_add_u32 m0, s47, {(7*m+i)*KB}\ns_nop 0")
            a.v(f"buffer_load_dwordx4 v0, {srd(s)}, s46 offen offset:{(i%4)*KB} lds", 'w')
    tr_addr(a, 5, 56, 47)
    a(f"s_mul_i32 s44, s49, {28*KB}\ns_mul_i32 s45, s{S_W}, {7*KB}\ns_add_u32 s44, s44, s45\ns_add_u32 s44, s44, {ACT+XA}")
    a("v_mov_b32 v6, 0\nv_mov_b32 v7, 0\nv_mov_b32 v12, 0x3f803f80")
    a.wait('x')
    for i in range(7):
        r = XK + 4*i
        a(f"v_permlane32_swap_b32 v{r}, v{r+2}\nv_permlane32_swap_b32 v{r+1}, v{r+3}")
        if i == 4: a("s_add_u32 s44, s44, 4096")
        a("s_nop 0")
        st1(a, r, 44, (i % 4)*KB, 'st', 0, SC)
        for d in range(4): a(f"v_dot2c_f32_bf16 v6, v{r+d}, v12\nv_dot2c_f32_bf16 v7, v{r+d}, v{r+d}")
    a("s_nop 2"); xhalf(a, 6, 8); xhalf(a, 7, 8)
    a(f"s_lshl_b32 s30, s{S_W}, 8\nv_lshl_add_u32 v9, v1, 3, s30\nv_add_u32 v9, {L_MISC}, v9\ns_mov_b32 exec_hi, 0\nds_write_b64 v9, v[6:7]\ns_mov_b32 exec_hi, -1")
    a(f"s_mul_i32 s44, s49, {14*256}\ns_lshl_b32 s45, s{S_W}, 10\ns_add_u32 s44, s44, s45\ns_add_u32 s44, s44, {ACT+SA}")
    a("v_lshrrev_b32 v8, 1, v0\nv_mov_b32 v10, 0\nv_mov_b32 v11, 0\ns_mov_b32 exec_lo, 0\nv_mov_b32 v6, 0\nv_mov_b32 v7, 0\ns_mov_b32 exec_lo, -1")
    a.v(f"buffer_store_dwordx2 v[6:7], v8, {srd(WS)}, s44 offen sc1")
    sk = a.label('Lsz')
    a(f"s_cmp_eq_u32 s{S_W}, 3\ns_cbranch_scc1 {sk}\nbuffer_store_dwordx2 v[10:11], v8, {srd(WS)}, s44 offen offset:512 sc1\n{sk}:")
    a.wait('w')
    W = 132
    for i in range(14):
        o = (i // 7)*7*KB + (i % 7)*896
        a(f"ds_read_b64_tr_b16 {vr(W+4*i,2)}, v5 offset:{o}\nds_read_b64_tr_b16 {vr(W+4*i+2,2)}, v5 offset:{o+448}")
    a(f"s_waitcnt lgkmcnt(0)\ns_barrier\nv_lshlrev_b32 v9, 3, v1\nv_add_u32 v9, {L_MISC}, v9")
    for w in range(4): a(f"ds_read_b64 {vr(100+2*w,2)}, v9 offset:{256*w}")
    sk = a.label('Lkw')
    a(f"s_cmp_lg_u32 s49, 0\ns_cbranch_scc1 {sk}\ns_add_u32 s44, s47, {WKF}")
    for i in range(14):
        if i and i % 4 == 0: a("s_add_u32 s44, s44, 4096")
        a(f"buffer_store_dwordx4 {vr(W+4*i,4)}, v0, {srd(WS)}, s44 offen offset:{(i%4)*KB} sc1")
    a(f"{sk}:\ns_waitcnt lgkmcnt(0)\nv_add_f32 v100, v100, v102\nv_add_f32 v101, v101, v103\nv_add_f32 v104, v104, v106\nv_add_f32 v105, v105, v107")
    a("v_add_f32 v6, v100, v104\nv_add_f32 v7, v101, v105")
    for i in stats_tail(6, 7): a(i)
    a(f"s_lshl_b32 s48, s49, 12\ns_lshl_b32 s45, s{S_W}, 10\ns_add_u32 s48, s48, s45\ns_add_u32 s48, s48, {ACT+KVO}")
    kv_core(a, lambda i: W + 4*i, 48)
```

```python
import sys
from p_common import *
import p_prep, p_att, p_ffn
NAME = 'interleave_layers__grouped_kv_mqa__glu_gated_glu__prompt_kernel'
def roles(a, force_slow):
    a("s_mov_b32 s25, 0")
    for x in range(8):
        for i in range(4): a(f"v_cmp_eq_u32 s[{44+2*i}:{45+2*i}], {x}, v{8+i}")
        a("s_nop 0")
        for i in range(4): a(f"s_bcnt1_i32_b64 s{44+2*i}, s[{44+2*i}:{45+2*i}]")
        a("s_add_u32 s44, s44, s46\ns_add_u32 s48, s48, s50\ns_add_u32 s44, s44, s48\ns_xor_b32 s44, s44, 32\ns_or_b32 s25, s25, s44")
    a("v_lshrrev_b32 v12, 4, v0")
    for i in range(4):
        a(f"v_cmp_eq_u32 s[{44+2*i}:{45+2*i}], s57, v{8+i}\nv_cmp_gt_u32 vcc, s2, v12\nv_add_u32 v12, 64, v12\ns_nop 0\ns_and_b64 vcc, vcc, s[{44+2*i}:{45+2*i}]\ns_bcnt1_i32_b64 s{44+2*i}, vcc")
    a("s_add_u32 s44, s44, s46\ns_add_u32 s48, s48, s50\ns_add_u32 s44, s44, s48\ns_lshl_b32 s44, s44, 3\ns_or_b32 s44, s44, s57\ns_or_b32 s24, s2, 0x100")
    if force_slow: a("s_mov_b32 s25, 1")
    a("s_cmp_eq_u32 s25, 0\ns_cselect_b32 s24, s44, s24")
def kernel(force_slow=False):
    a = A2()
    end, fin, pdone, again, retry, p1, l0 = [a.label(x) for x in ('Lend', 'Lfin', 'Lpdone', 'Lagain', 'Lretry', 'Lpro', 'Lfirst')]
    a(f"s_cmp_ge_u32 s2, 256\ns_cbranch_scc1 {fin}")
    stamp_head(a)
    a(f"s_load_dwordx2 s[{WS}:{WS+1}], s[0:1], 88\nv_lshrrev_b32 v1, 6, v0\nv_and_b32 v13, 63, v0\ns_getreg_b32 s57, hwreg(HW_REG_XCC_ID, 0, 4)")
    a(f"v_readfirstlane_b32 s{S_W}, v1\nv_and_b32 v1, 31, v13\nv_lshrrev_b32 v2, 5, v13\nv_lshlrev_b32 v0, 4, v13\nv_lshlrev_b32 v13, 2, v13")
    a(f"s_mov_b32 s{WS+2}, {WS_END}\ns_mov_b32 s{WS+3}, 0x20000\ns_mov_b32 s{S_SPIN}, 0\ns_mov_b32 s{S_L}, 0\ns_mov_b32 s{S_LB}, {ACT}")
    a(f"s_getpc_b64 s[24:25]\nLpc:\ns_lshr_b32 s26, s2, 3\ns_lshl_b32 s26, s26, 2\ns_add_u32 s26, s26, s{S_W}\ns_lshl_b32 s26, s26, 10")
    a(f"v_add_u32 v8, s26, v0\nv_min_u32 v8, Lcode_end-Lpc-16, v8\nv_mov_b32 v9, s25\nv_add_co_u32 v8, vcc, s24, v8\nv_addc_co_u32 v9, vcc, 0, v9, vcc")
    a.v("global_load_dwordx4 v[244:247], v[8:9], off")
    a(f"s_waitcnt lgkmcnt(0)\ns_load_dword s56, s[{WS}:{WS+1}], {EPOCH}" if EPOCH < (1 << 20) else
      f"s_waitcnt lgkmcnt(0)\ns_mov_b32 s26, {EPOCH}\ns_load_dword s56, s[{WS}:{WS+1}], s26")
    p_prep.prep(a, pdone)
    a(f"{pdone}:"); load_out = p_prep.load_srd
    load_out(a, 72, 2048*896)
    a.wait0(); a("s_waitcnt lgkmcnt(0)")
    stamp(a, 1)
    a(f"s_mul_i32 s{S_B}, s56, 0x9E3779B1\ns_add_u32 s{S_B}, s{S_B}, 0x5bd1e900\ns_andn2_b32 s{S_B}, s{S_B}, 0xff\ns_add_u32 s{S_TAG}, s{S_B}, 1\ns_barrier")
    w123, nepo = a.label('Lw'), a.label('Lne')
    a(f"s_cmp_lg_u32 s{S_W}, 0\ns_cbranch_scc1 {w123}\ns_lshl_b32 s24, s2, 6\ns_add_u32 s24, s24, {GF1}\ns_add_u32 s{S_B}, s{S_B}, s57")
    publish_global(a, 24, 0x80)
    a(f"s_sub_u32 s{S_B}, s{S_B}, s57")
    poll_global(a, GF1, 4, 0x80)
    roles(a, force_slow)
    a(f"v_mov_b32 v8, s24\nv_mov_b32 v9, {L_MISC+1024}\nds_write_b32 v9, v8\ns_cmp_lg_u32 s2, 0\ns_cbranch_scc1 {nepo}")
    a(f"s_add_u32 s56, s56, 1\nv_mov_b32 v14, s56\nv_mov_b32 v15, 0\ns_mov_b32 s25, {EPOCH}\ns_mov_b64 exec, 1\nbuffer_store_dword v14, v15, {srd(WS)}, s25 offen sc1\ns_mov_b64 exec, -1")
    a(f"{nepo}:\ns_waitcnt lgkmcnt(0)\n{w123}:\ns_barrier\nv_mov_b32 v9, {L_MISC+1024}\nds_read_b32 v8, v9\ns_waitcnt lgkmcnt(0)\nv_readfirstlane_b32 s24, v8\ns_nop 3")
    a(f"s_lshr_b32 s{S_MODE}, s24, 8\ns_and_b32 s25, s24, 7\ns_bfe_u32 s26, s24, 0x50003")
    a(f"s_lshr_b32 s{S_TB}, s26, 2\ns_lshl_b32 s27, s25, 3\ns_add_u32 s{S_TB}, s{S_TB}, s27\ns_and_b32 s{S_Q}, s26, 3\ns_and_b32 s{S_JJ}, s26, 15")
    a(f"s_and_b32 s{S_GTB}, s{S_TB}, 0x3c\ns_lshl_b32 s{S_FB}, s{S_GTB}, 6\ns_add_u32 s{S_FB}, s{S_FB}, {FL}")
    a(f"s_lshl_b32 s{S_FO}, s{S_JJ}, 2\ns_add_u32 s{S_FO}, s{S_FO}, s{S_W}\ns_lshl_b32 s{S_FO}, s{S_FO}, 2\ns_add_u32 s{S_FO}, s{S_FO}, s{S_FB}")
    a(f"s_cmp_ge_u32 s{S_JJ}, 7\ns_cselect_b32 s{S_DTP}, 1, 0\ns_cselect_b32 s27, 7, 0\ns_sub_u32 s{S_DFP}, s{S_JJ}, s27\ns_min_u32 s{S_DFP}, s{S_DFP}, 6")
    stamp(a, 2)
    p_att.pro0(a)
    stamp(a, 3)
    a(f"s_branch {l0}\n{p1}:")
    a.vm = []
    p_att.pro1(a)
    a(f"{l0}:\ns_mov_b32 s29, 0\n{again}:")
    pf = p_att.att_prefetch(a)
    p_att.main_loop(a, pf)
    stamp(a, 4, 0); stamp(a, 15, 1)
    p_att.finish(a, retry)
    publish(a)
    stamp(a, 5, 0)
    p_att.oproj(a)
    p_ffn.gu(a)
    p_ffn.down(a, p1, end)
    a(f"{retry}:\ns_waitcnt vmcnt(0)")
    p_att.max_pass(a)
    p_att.kv_first(a)
    a(f"s_mov_b32 s29, 1\ns_branch {again}\n{end}:")
    stamp_tail(a)
    a(f"{fin}:\ns_endpgm\nLcode_end:")
    return a.text()
if __name__ == '__main__':
    out = sys.argv[1]; opts = sys.argv[2] if len(sys.argv) > 2 else ''
    STAMP_ON[0] = 't' in opts
    s = build_file([(NAME, kernel('s' in opts), 256, 256, 102)], [(NAME, 256, 256, LDS_SIZE)], single=True)
    open(out, 'w').write(s); assemble(out, NAME); print(len(s))
```

```python
from p_common import *
from p_prep import kv_core, XK
Q, S, P, O, KVR, RES = 16, 48, 80, 96, 160, 224
WO = 256 + 128
TU = 50 if 'E' in OPT else 61
NT = ' nt' if 'N' in OPT else ''
def kv_ld(a, b, isv):
    if isv == 0: a(f"s_mov_b32 s26, {b*4096}")
    else: a(f"s_mov_b32 s27, {b*4096}")
    for i in range(2):
        a.v(f"buffer_load_dwordx4 {R(KVR+16*(b&3)+8*isv+4*i,4)}, v0, {srd(SRD_KV)}, s{26+isv} offen offset:{(2*isv+i)*KB}", ('kv', b, isv))
def kv_srd(a):
    a(f"s_lshl_b32 s24, s{S_W}, 16\ns_add_u32 s24, s24, s{S_LB}\ns_add_u32 s24, s24, {KVO}\ns_add_u32 s{SRD_KV}, s{WS}, s24\ns_addc_u32 s{SRD_KV+1}, s{WS+1}, 0")
    a(f"s_mov_b32 s{SRD_KV+2}, 65536\ns_mov_b32 s{SRD_KV+3}, 0x20000")
def kv_first(a):
    for b in range(4):
        kv_ld(a, b, 0)
        if b < 3: kv_ld(a, b, 1)
def qk(a, h, slot, sb, half):
    a(f"{MF} {vr(S+16*sb,16)}, {R(KVR+16*slot+4*half,4)}, {vr(Q+8*h+4*half,4)}, {vr(S+16*sb,16) if half else 0}")
def pv(a, h, slot, pb, half, first=False):
    a(f"{MF} {R(O+16*h,16)}, {R(KVR+16*slot+8+4*half,4)}, {vr(P+8*pb+4*half,4)}, {0 if first and not half else R(O+16*h,16)}")
def dma7(a, t, slot, tag):
    def f(i):
        def g():
            if i % 4 == 0: a(f"s_add_u32 s46, s44, {t*28*KB + i*KB}\ns_add_u32 m0, s45, {slot + i*KB}\ns_nop 0")
            a.v(f"buffer_load_dwordx4 v0, {srd(WS)}, s46 offen offset:{(i%4)*KB}{NT} lds", tag)
        return g
    return [f(i) for i in range(7)]
def wd(a, k, fi):
    def g():
        if k % 4 == 0: a(f"s_add_u32 s{52+fi}, s54, {k*KB + fi*112*KB}")
        ld1(a, 256 + 8*k + 4*fi, 52+fi, (k % 4)*KB, 'wd', 0, NT)
    return g
def att_prefetch(a):
    a(f"s_mul_i32 s45, s{S_W}, {7*KB}\ns_mul_i32 s44, s{S_JJ}, {7*28*KB}\ns_add_u32 s44, s44, s45\ns_add_u32 s44, s44, {WGU}")
    a(f"s_lshl_b32 s47, s{S_Q}, 2\ns_add_u32 s47, s47, s{S_W}\ns_min_u32 s47, s47, 13\ns_lshl_b32 s48, s47, 15\ns_add_u32 s48, s48, {WOF}")
    a(f"s_mul_i32 s50, s{S_TB}, {28*KB}\ns_lshl_b32 s51, s47, 11\ns_add_u32 s50, s50, s51\ns_add_u32 s50, s50, {XA}")
    a(f"s_mul_i32 s51, s{S_JJ}, {7*128}\ns_add_u32 s51, s51, {CS+16*128}")
    def wo(i):
        def g():
            if i % 4 == 0: a(f"s_add_u32 s49, s48, {i*KB}")
            ld1(a, WO+4*i, 49, (i % 4)*KB, 'wo')
        return g
    def cs():
        a(f"s_mov_b32 m0, {L_CS}\ns_nop 0"); a.v(f"buffer_load_dwordx4 v0, {srd(WS)}, s51 offen lds", 'cs')
    pf = [wo(i) for i in range(32)] + [lambda i=i: ld1(a, RES+4*i, 50, i*KB, 'res', 0, SL) for i in range(2)] + [cs]
    a(f"s_mul_i32 s54, s{S_DFP}, {224*KB}\ns_mul_i32 s52, s{S_W}, {28*KB}\ns_add_u32 s54, s54, s52\ns_add_u32 s54, s54, {WDF}")
    pf += [wd(a, k, fi) for k in range(16) for fi in range(2)]
    for t in range(3): pf += dma7(a, t, L_GU + t*28*KB, ('T', t))
    a(f"s_add_u32 s24, s{S_GTB}, s{S_W}\ns_lshl_b32 s24, s24, 4\ns_add_u32 s24, s24, s{S_JJ}\ns_mul_i32 s24, s24, {7*KB}\ns_add_u32 s24, s24, {HO}")
    a(f"s_add_u32 s16, s{WS}, s24\ns_addc_u32 s17, s{WS+1}, 0\ns_mov_b32 s55, 60\ns_cmp_eq_u32 s{S_L}, 0\ns_cselect_b32 s28, 128, {128 if 'B' in OPT else 0}")
    return pf
def main_loop(a, pf):
    a.wait(('kv', 0, 0))
    qk(a, 0, 0, 0, 0); qk(a, 0, 0, 0, 1)
    a("s_nop 10")
    pf = list(pf)
    for u in range(64):
        kb, h = u >> 2, u & 3
        sr_, pb = S + 16*(u & 1), P + 8*(u & 1)
        for q in range(4):
            if q == 0 and h == 3 and kb < 15: a.wait(('kv', kb+1, 0))
            if q == 2 and h == 1: a.wait(('kv', kb, 1))
            if q < 2:
                if u < 63: qk(a, (u+1) & 3, ((u+1) >> 2) & 3, (u+1) & 1, q)
            elif u: pv(a, (u-1) & 3, ((u-1) >> 2) & 3, (u-1) & 1, q-2, u <= 4)
            if q == 1 and h == 3 and kb + 4 < 16: kv_ld(a, kb+4, 0)
            if q == 2 and h == 1 and kb + 3 < 16: kv_ld(a, kb+3, 1)
            if (q == 3 or (q == 0 and u % 2 == 0)) and pf: pf.pop(0)()
            if u < 56 and q == 1 and 'A' not in OPT: a(f"s_load_dwordx2 s[18:19], s[16:17], s55\ns_add_u32 s55, s55, s28")
            for e in range(4): a(f"v_exp_f32 v{sr_+4*q+e}, v{sr_+4*q+e}")
            cv = [] if q == 0 else [2*(q-1), 2*(q-1)+1] + ([6, 7] if q == 3 else [])
            for c in cv: a(f"v_cvt_pk_bf16_f32 v{pb+c}, v{sr_+2*c}, v{sr_+2*c+1}")
    assert not pf
    a("s_nop 0")
    pv(a, 3, 3, 1, 0); pv(a, 3, 3, 1, 1)
def rot(a, i, shift, mul, v, base=0):
    a(f"s_add_u32 s30, s{S_W}, {i}\ns_and_b32 s30, s30, 3\ns_mul_i32 s30, s30, {mul}\nv_add_u32 v{v}, s30, v{base}")
def max_pass(a):
    for h in range(4): a(f"v_mov_b32 v{P+h}, 0xff800000")
    a("s_mov_b32 s26, 0\ns_mov_b32 s28, 16")
    L = a.label('Lmax')
    a(f"{L}:")
    for i in range(2): a(f"buffer_load_dwordx4 {R(KVR+4*i,4)}, v0, {srd(SRD_KV)}, s26 offen offset:{i*KB}")
    a("s_add_u32 s26, s26, 4096\ns_waitcnt vmcnt(0)")
    for h in range(4):
        qk(a, h, 0, 0, 0); qk(a, h, 0, 0, 1); a("s_nop 12")
        for r in range(8): a(f"v_max3_f32 v{P+h}, v{S+2*r}, v{S+2*r+1}, v{P+h}")
    a(f"s_sub_u32 s28, s28, 1\ns_cmp_lg_u32 s28, 0\ns_cbranch_scc1 {L}")
    a(f"s_lshl_b32 s24, s{S_W}, 8\nv_add_u32 v6, s24, v13\nv_lshlrev_b32 v7, 2, v1")
    for h in range(4): rot(a, h, 0, KB, 5, 6); a(f"ds_write_b32 v5, v{P+h} offset:{L_Q}")
    a("s_waitcnt lgkmcnt(0)\ns_barrier")
    for h in range(4):
        rot(a, h, 0, KB, 5, 7)
        for i in range(8): a(f"ds_read_b32 v{S+i}, v5 offset:{L_Q+128*i}")
        a("s_waitcnt lgkmcnt(0)")
        for i in (1, 3, 5): a(f"v_max3_f32 v{S}, v{S+i}, v{S+i+1}, v{S}")
        a(f"v_max_f32 v{S}, v{S}, v{S+7}\nv_sub_f32 v8, 0, v{S}")
        a("v_and_b32 v9, 0xffff0000, v8\nv_sub_f32 v8, v8, v9\nv_and_b32 v10, 0xffff0000, v8\nv_sub_f32 v8, v8, v10")
        a(f"v_lshrrev_b32 v9, 16, v9\ns_mov_b32 exec_lo, 0\nv_or_b32 v{Q+8*h+6}, v9, v10\nv_lshrrev_b32 v{Q+8*h+7}, 16, v8\ns_mov_b32 exec_lo, -1")
    a("s_barrier")
def finish(a, retry):
    for i in range(1, 4): rot(a, i, 0, 12*KB, 4+i)
    rot(a, 0, 0, 12*KB, 8)
    for i in range(1, 4):
        if i == 3: a("s_nop 7")
        for q in range(4): a(f"ds_write_b128 v{4+i}, {R(O+16*i+4*q,4)} offset:{(4*(i-1)+q)*KB}")
    a("s_waitcnt lgkmcnt(0)\ns_barrier")
    for j in range(12): a(f"ds_read_b128 {vr(O+16+4*j,4)}, v8 offset:{j*KB}")
    a(f"s_mul_i32 s24, s{S_TB}, {OSTR}\ns_lshl_b32 s25, s{S_Q}, 13\ns_add_u32 s24, s24, s25\ns_lshl_b32 s25, s{S_W}, 11\ns_add_u32 s24, s24, s25")
    a(f"s_add_u32 s24, s24, {OO}")
    for w in range(1, 4):
        a(f"s_waitcnt lgkmcnt({12-4*w})")
        for r in [12] + list(range(12)) + [13, 14, 15]: a(f"v_add_f32 v{O+r}, v{O+r}, v{O+16*w+r}")
        if w == 3: a(f"v_mov_b32 v6, v{O+12}\nv_mov_b32 v5, v{O+12}\nv_mov_b32 v8, 0\nv_mov_b32 v9, 0x21800000")
    a("v_permlane32_swap_b32 v6, v5\nv_mov_b32 v10, 0x5d800000\ns_nop 0\nv_rcp_f32 v7, v5")
    a(f"v_cmp_nge_f32 vcc, v5, v9\nv_cmp_nle_f32 s[30:31], v5, v10")
    for r in range(16): a(f"v_mul_f32 v{O+r}, v{O+r}, v7\nv_fmac_f32 v8, 0, v{O+r}")
    a(f"s_or_b64 s[30:31], s[30:31], vcc\nv_cmp_u_f32 vcc, v8, v8")
    for i in range(8): a(f"v_cvt_pk_bf16_f32 v{P+i}, v{O+2*i}, v{O+2*i+1}")
    a(f"s_or_b64 s[30:31], s[30:31], vcc\ns_mov_b32 exec_lo, 0\nv_mov_b32 v{P+6}, 0\nv_mov_b32 v{P+7}, 0\ns_mov_b32 exec_lo, -1")
    st1(a, P, 24, 0); st1(a, P+4, 24, KB)
    a(f"s_cmp_lg_u64 s[30:31], 0\ns_cselect_b32 s30, 1, 0\ns_andn2_b32 s30, s30, s29\nv_mov_b32 v7, s30\ns_lshl_b32 s30, s{S_W}, 2\ns_add_u32 s30, s30, {L_MISC}\nv_mov_b32 v8, s30")
    a(f"ds_write_b32 v8, v7\ns_waitcnt lgkmcnt(0)\ns_barrier\nv_mov_b32 v8, {L_MISC}\nds_read_b128 v[8:11], v8")
    a(f"s_waitcnt lgkmcnt(0)\nv_or3_b32 v8, v8, v9, v10\nv_or_b32 v8, v8, v11\ns_nop 0\nv_readfirstlane_b32 s30, v8\ns_nop 3\ns_cmp_lg_u32 s30, 0\ns_cbranch_scc1 {retry}")
def att_loads(a):
    a(f"s_mul_i32 s25, s{S_W}, {7*KB}\ns_mul_i32 s24, s{S_TB}, {28*KB}\ns_add_u32 s24, s24, s25\ns_add_u32 s24, s24, {XA}")
    dman(a, 7, 24, 25, 'x', SL)
    a(f"s_mul_i32 s24, s{S_TB}, {14*256}\ns_add_u32 s24, s24, {SA}")
    ld_stats(a, 100, 24, 8, 'stat')
    a(f"s_lshl_b32 s25, s{S_Q}, 2\ns_add_u32 s25, s25, s{S_W}\ns_lshl_b32 s24, s25, 7\ns_add_u32 s24, s24, {CS}")
    ld_cs(a, 116, 24, 9, 'qcs')
    a(f"s_mul_i32 s24, s25, {28*KB}\ns_add_u32 s24, s24, {WQF}")
    ldn(a, 256, 28, 24, lambda i: ('wq', i))
def q_proj(a, before_barrier=None):
    B = 224
    for i in range(8): a(f"ds_read_b128 {vr(B+4*i,4)}, v0 offset:{i*KB}")
    a(f"v_mul_f32 v7, {fhex(QSCALE)}, v7")
    for i in range(28):
        if ('wq', i) in a.vm and i % 2 == 0: a.wait(('wq', i+1))
        a(f"s_waitcnt lgkmcnt({min(7, 27-i)})")
        a(f"{MF} {vr(S,16)}, {R(256+4*i,4)}, {vr(B+4*(i%8),4)}, {vr(S,16) if i else 0}")
        if i + 8 < 28: a(f"ds_read_b128 {vr(B+4*(i%8),4)}, v0 offset:{(i+8)*KB}")
    stamp(a, 12, 0, 'p')
    rot(a, 0, 0, 2*KB, 5)
    for i in range(1, 4): rot(a, i, 0, 2*KB, 132+i)
    a("s_nop 2")
    for r in range(16): a(f"v_fma_f32 v{S+r}, -v6, v{116+r}, v{S+r}\nv_mul_f32 v{S+r}, v7, v{S+r}")
    for i in range(8): a(f"v_cvt_pk_bf16_f32 v{P+i}, v{S+2*i}, v{S+2*i+1}")
    a(f"s_mov_b32 exec_lo, 0\nv_mov_b32 v{P+6}, 0\nv_mov_b32 v{P+7}, 0\ns_mov_b32 exec_lo, -1")
    a(f"ds_write_b128 v5, {vr(P,4)} offset:{L_Q}\nds_write_b128 v5, {vr(P+4,4)} offset:{L_Q+KB}")
    if before_barrier: before_barrier()
    a("s_waitcnt lgkmcnt(0)\ns_barrier")
    for i in range(4):
        for j in range(2): a(f"ds_read_b128 {vr(Q+8*i+4*j,4)}, v{132+i if i else 5} offset:{L_Q+j*KB}")
def pro0(a):
    att_loads(a); kv_srd(a); kv_first(a)
    a.wait('stat'); stamp(a, 11, None, 'p'); a("s_barrier")
    fin_stats(a, 100, 6, 7, 8)
    q_proj(a)
    a("s_waitcnt lgkmcnt(0)")
def pro1(a):
    a(f"s_lshr_b32 s24, s{S_JJ}, 3\ns_mul_i32 s24, s24, 28\ns_bfe_u32 s25, s{S_JJ}, 0x10002\ns_lshl_b32 s25, s25, 1\ns_add_u32 s24, s24, s25")
    a(f"s_mov_b32 s{S_MASK}, 0x3333333\ns_mov_b32 s{S_MASK+1}, 0\ns_lshl_b64 s[{S_MASK}:{S_MASK+1}], s[{S_MASK}:{S_MASK+1}], s24")
    await_(a); next_tag(a)
    stamp(a, 12)
    att_loads(a); kv_srd(a)
    a.wait('stat')
    fin_stats(a, 100, 6, 7, 8)
    nokv = a.label('Lnokv')
    a(f"s_cmp_lg_u32 s{S_Q}, 0\ns_cbranch_scc1 {nokv}\ns_mul_i32 s24, s{S_W}, {7*KB}\nv_add_u32 v8, s24, v0")
    for i in range(7): a(f"ds_read_b128 {vr(XK+4*i,4)}, v8 offset:{i*KB}")
    a(f"s_lshl_b32 s48, s{S_TB}, 12\ns_lshl_b32 s24, s{S_W}, 10\ns_add_u32 s48, s48, s24\ns_add_u32 s48, s48, s{S_LB}\ns_add_u32 s48, s48, {KVO}\ns_waitcnt lgkmcnt(0)")
    vm = list(a.vm)
    kv_core(a, lambda i: 256+224+4*i if i < 8 else 232+4*(i-8), 48)
    a(f"s_waitcnt vmcnt(0)\ns_barrier\ns_cmp_lg_u32 s{S_W}, 0\ns_cbranch_scc1 {nokv}\ns_lshl_b32 s24, s{S_TB}, 6\ns_add_u32 s24, s24, {GF2}")
    publish_global(a, 24, 0x40)
    stamp(a, 13)
    a(f"{nokv}:\ns_barrier")
    a.vm = vm
    def poll():
        sk = a.label('Lnp')
        a(f"s_cmp_lg_u32 s{S_W}, 0\ns_cbranch_scc1 {sk}")
        poll_global(a, GF2, 1, 0x40)
        a(f"{sk}:")
    q_proj(a, poll)
    kv_first(a)
    a("s_waitcnt lgkmcnt(0)")
    stamp(a, 14)
def oproj(a):
    a(f"s_lshr_b32 s24, s{S_JJ}, 2\ns_lshl_b32 s24, s24, 4\ns_mov_b32 s{S_MASK}, 0xffff\ns_mov_b32 s{S_MASK+1}, 0\ns_lshl_b64 s[{S_MASK}:{S_MASK+1}], s[{S_MASK}:{S_MASK+1}], s24")
    a(f"s_lshl_b32 s25, s{S_W}, 13\ns_mul_i32 s24, s{S_TB}, {OSTR}\ns_add_u32 s24, s24, s25\ns_add_u32 s24, s24, {OO}")
    await_(a); next_tag(a)
    stamp(a, 6, 0)
    dman(a, 8, 24, 25, 'o', SL)
    a(f"s_mul_i32 s24, s{S_TB}, {14*256}\ns_lshl_b32 s25, s47, 8\ns_add_u32 s25, s25, s24\ns_add_u32 s25, s25, {SB}\ns_add_u32 s24, s50, {XB-XA}")
    a.wait0(); a("s_barrier")
    idle, join = a.label('Lidle'), a.label('Ljoin')
    a(f"s_lshl_b32 s30, s{S_Q}, 2\ns_add_u32 s30, s30, s{S_W}\ns_cmp_ge_u32 s30, 14\ns_cbranch_scc1 {idle}")
    B, A = 48, 16
    for i in range(8): a(f"ds_read_b128 {vr(B+4*i,4)}, v0 offset:{i*KB}")
    for i in range(32):
        a(f"s_waitcnt lgkmcnt({min(7, 31-i)})")
        a(f"{MF} {vr(A,16)}, {R(WO+4*i,4)}, {vr(B+4*(i%8),4)}, {vr(A,16) if i else 0}")
        if i + 8 < 32: a(f"ds_read_b128 {vr(B+4*(i%8),4)}, v0 offset:{(i+8)*KB}")
    a("s_barrier\ns_nop 9")
    add_resid(a, A, RES, 32)
    store_x(a, A, RES, 32, 24, 25, 5)
    publish(a)
    a(f"s_branch {join}\n{idle}:\ns_barrier\n{join}:")
    stamp(a, 7, 0)
```

```python
from asmlib import *
import struct
KB = 1024
WQF = 0
WKF = WQF + 16*28*KB
WOF = WKF + 56*KB
WGU = WOF + 14*32*KB
WDF = WGU + 112*28*KB
CS  = WDF + 14*112*KB
ACT = CS + 17*KB
XA = XB = ACT; SA = SB = XA + 64*28*KB
HO = OO = SB + 64*14*256; OSTR = 112*KB
KVO = HO + 64*112*KB; LSTR = 64*4*KB
GF1 = KVO + 2*LSTR; GF2 = GF1 + 16*KB; FL = GF2 + 4*KB; EPOCH = FL + 8*KB
WS_END = EPOCH + KB
XF = [XA, XB, XA, XB]; KVF = [KVO, LSTR+KVO]; OF = [OO, OO]; HF = [HO, HO]
MF = "v_mfma_f32_32x32x16_bf16"
OOB = 0x40000000
LOG2E = 1.4426950408889634
QSCALE = (28 ** -0.5) * LOG2E
def fhex(x): return hex(struct.unpack('<I', struct.pack('<f', x))[0])
S_W, S_TB, S_Q, S_JJ, S_LB = 3, 4, 5, 6, 7
WS, SRD_A, SRD_B, SRD_KV = 8, 12, 16, 20
S_B, S_MODE, S_FB, S_FO, S_TAG, S_L, S_GTB, S_SPIN, S_DTP, S_DFP, S_MASK, S_G = 32, 33, 34, 35, 36, 37, 38, 39, 40, 41, 42, 44
import os
OPT = os.environ.get('OPT', '')
SC = ' sc1'
SL = '' if 'n' in OPT else ' sc1'
L_Q, L_GU, L_CS, L_W, L_KVR, L_TR, L_MISC, LDS_SIZE = 48*KB, 56*KB, 140*KB, 56*KB, 112*KB, 144*KB, 148*KB, 152*KB

class A2(Asm):
    def __init__(self):
        super().__init__(); self.vm = []
    def v(self, s, tag=None):
        self(s); self.vm.append(tag)
    def n_after(self, tag):
        idx = max(i for i, t in enumerate(self.vm) if t == tag)
        return len(self.vm) - 1 - idx
    def wait(self, tag, extra=''):
        n = self.n_after(tag)
        self(f"s_waitcnt vmcnt({min(n, 63)}){extra}")
    def wait0(self):
        self("s_waitcnt vmcnt(0)"); self.vm = []
def srd(b): return f"s[{b}:{b+3}]"
def ld1(a, dst, soff, imm, tag, voff=0, fl='', s=WS):
    a.v(f"buffer_load_dwordx4 {R(dst,4)}, v{voff}, {srd(s)}, s{soff} offen offset:{imm}{fl}", tag)
def ldn(a, dst, n, soff, tag, fl='', i0=0):
    for i in range(i0, i0+n):
        if i and i % 4 == 0: a(f"s_add_u32 s{soff}, s{soff}, 4096")
        ld1(a, dst + 4*i, soff, (i % 4)*KB, tag(i) if callable(tag) else tag, 0, fl)
def dman(a, n, soff, sm0, tag, fl='', i0=0):
    for i in range(i0, i0+n):
        if i % 4 == 0:
            if i: a(f"s_add_u32 s{soff}, s{soff}, 4096\ns_add_u32 s{sm0}, s{sm0}, 4096")
            a(f"s_mov_b32 m0, s{sm0}\ns_nop 0")
        a.v(f"buffer_load_dwordx4 v0, {srd(WS)}, s{soff} offen offset:{(i%4)*KB}{fl} lds", tag)
def st1(a, src, soff, imm, tag='st', voff=0, fl=''):
    a.v(f"buffer_store_dwordx4 {R(src,4)}, v{voff}, {srd(WS)}, s{soff} offen offset:{imm}{fl}", tag)
def ld_stats(a, dst, soff, vtmp, tag, fl=SL):
    a(f"v_mul_u32_u24 v{vtmp}, {7*256}, v2\nv_lshl_add_u32 v{vtmp}, v1, 3, v{vtmp}")
    for i in range(7):
        a.v(f"buffer_load_dwordx2 {vr(dst+2*i,2)}, v{vtmp}, {srd(WS)}, s{soff} offen offset:{i*256}{fl}", tag)
def stats_tail(mu, rs):
    return [f"v_mul_f32 v{mu}, {fhex(1/448)}, v{mu}", f"v_mul_f32 v{rs}, {fhex(1/448)}, v{rs}",
            f"v_fma_f32 v{rs}, -v{mu}, v{mu}, v{rs}", f"v_max_f32 v{rs}, 0, v{rs}", f"v_add_f32 v{rs}, {fhex(1e-5)}, v{rs}",
            f"v_rsq_f32 v{rs}, v{rs}", "s_nop 0"]
def fin_stats_list(src, mu, rs, t):
    o = []
    for i in (1, 3, 5): o += [f"v_add_f32 v{src+2*i}, v{src+2*i}, v{src+2*i+2}", f"v_add_f32 v{src+2*i+1}, v{src+2*i+1}, v{src+2*i+3}"]
    o += [f"v_add_f32 v{src}, v{src}, v{src+2}", f"v_add_f32 v{src+1}, v{src+1}, v{src+3}",
          f"v_add_f32 v{src+6}, v{src+6}, v{src+10}", f"v_add_f32 v{src+7}, v{src+7}, v{src+11}",
          f"v_add_f32 v{mu}, v{src}, v{src+6}", f"v_add_f32 v{rs}, v{src+1}, v{src+7}",
          f"v_mov_b32 v{t}, v{mu}", f"v_mov_b32 v{t+1}, v{rs}", "s_nop 1",
          f"v_permlane32_swap_b32 v{t}, v{mu}", f"v_permlane32_swap_b32 v{t+1}, v{rs}", "s_nop 1",
          f"v_add_f32 v{mu}, v{mu}, v{t}", f"v_add_f32 v{rs}, v{rs}, v{t+1}"]
    return o + stats_tail(mu, rs)
def fin_stats(a, src, mu, rs, t):
    for i in fin_stats_list(src, mu, rs, t): a(i)
def ld_cs(a, dst, soff, vtmp, tag):
    a(f"v_lshlrev_b32 v{vtmp}, 4, v2")
    for q in range(4): ld1(a, dst+4*q, soff, 32*q, tag, vtmp)
def add_resid(a, acc, res, t):
    for i in range(8):
        a(f"v_lshlrev_b32 v{t}, 16, v{res+i}\nv_and_b32 v{t+1}, 0xffff0000, v{res+i}")
        a(f"v_add_f32 v{acc+2*i}, v{acc+2*i}, v{t}\nv_add_f32 v{acc+2*i+1}, v{acc+2*i+1}, v{t+1}")
    for i in range(8): a(f"v_cvt_pk_bf16_f32 v{res+i}, v{acc+2*i}, v{acc+2*i+1}")
def store_x(a, acc, res, t, s_x, s_st, vtmp):
    st1(a, res, s_x, 0); st1(a, res+4, s_x, KB)
    a(f"v_add_f32 v{t}, v{acc}, v{acc+1}\nv_mul_f32 v{t+1}, v{acc}, v{acc}\nv_add_f32 v{t+2}, v{acc+2}, v{acc+3}\nv_mul_f32 v{t+3}, v{acc+1}, v{acc+1}")
    a(f"v_fmac_f32 v{t+1}, v{acc+2}, v{acc+2}\nv_fmac_f32 v{t+3}, v{acc+3}, v{acc+3}")
    for i in range(4, 16, 2):
        a(f"v_add_f32 v{t}, v{t}, v{acc+i}\nv_fmac_f32 v{t+1}, v{acc+i}, v{acc+i}\nv_add_f32 v{t+2}, v{t+2}, v{acc+i+1}\nv_fmac_f32 v{t+3}, v{acc+i+1}, v{acc+i+1}")
    a(f"v_add_f32 v{t}, v{t}, v{t+2}\nv_add_f32 v{t+1}, v{t+1}, v{t+3}\nv_lshlrev_b32 v{vtmp}, 3, v1")
    a(f"v_mov_b32 v{t+2}, v{t}\nv_mov_b32 v{t+3}, v{t+1}\ns_nop 1")
    a(f"v_permlane32_swap_b32 v{t+2}, v{t}\nv_permlane32_swap_b32 v{t+3}, v{t+1}\ns_nop 1")
    a(f"v_add_f32 v{t}, v{t}, v{t+2}\nv_add_f32 v{t+1}, v{t+1}, v{t+3}\ns_mov_b32 exec_hi, 0")
    a.v(f"buffer_store_dwordx2 {vr(t,2)}, v{vtmp}, {srd(WS)}, s{s_st} offen", 'st')
    a("s_mov_b32 exec_hi, -1")
def store_out(a, res, s_out, vtmp):
    a(f"v_mul_u32_u24 v{vtmp}, 896, v1\nv_lshl_add_u32 v{vtmp}, v2, 4, v{vtmp}")
    a(f"v_permlane32_swap_b32 v{res}, v{res+2}\nv_permlane32_swap_b32 v{res+1}, v{res+3}")
    a(f"v_permlane32_swap_b32 v{res+4}, v{res+6}\nv_permlane32_swap_b32 v{res+5}, v{res+7}")
    a.v(f"buffer_store_dwordx4 {vr(res,4)}, v{vtmp}, {srd(SRD_A)}, s{s_out} offen")
    a.v(f"buffer_store_dwordx4 {vr(res+4,4)}, v{vtmp}, {srd(SRD_A)}, s{s_out} offen offset:32")

def publish(a, tag='st'):
    slow, done = a.label('Lps'), a.label('Lpd')
    if tag: a.wait(tag)
    a(f"v_mov_b32 v14, s{S_TAG}\nv_mov_b32 v15, 0\ns_cmp_lg_u32 s{S_MODE}, 0\ns_cbranch_scc1 {slow}\ns_mov_b64 exec, 1")
    a.v(f"buffer_store_dword v14, v15, {srd(WS)}, s{S_FO} offen", 'flag')
    a(f"s_branch {done}\n{slow}:\ns_waitcnt vmcnt(0)\nbuffer_wbl2 sc1\ns_waitcnt vmcnt(0)\ns_mov_b64 exec, 1")
    a(f"buffer_store_dword v14, v15, {srd(WS)}, s{S_FO} offen sc1\n{done}:\ns_mov_b64 exec, -1")
SPIN_MAX = 1 << 20
def await_(a):
    L, X, F = a.label('Lw'), a.label('Lwx'), a.label('Lwf')
    a(f"s_mov_b64 exec, s[{S_MASK}:{S_MASK+1}]\n{L}:\ns_add_u32 s{S_SPIN}, s{S_SPIN}, 1\ns_cmp_gt_u32 s{S_SPIN}, {SPIN_MAX}\ns_cbranch_scc1 {X}")
    a(f"buffer_load_dword v14, v13, {srd(WS)}, s{S_FB} offen sc1\ns_waitcnt vmcnt(0)")
    a(f"v_subrev_u32 v14, s{S_TAG}, v14\nv_cmp_lt_u32 vcc, 15, v14\ns_cbranch_vccnz {L}")
    a(f"{X}:\ns_mov_b64 exec, -1\ns_cmp_eq_u32 s{S_MODE}, 0\ns_cbranch_scc1 {F}\nbuffer_inv sc1\ns_waitcnt vmcnt(0)\n{F}:")
    a.vm = []
def next_tag(a): a(f"s_add_u32 s{S_TAG}, s{S_TAG}, 1")
def poll_global(a, base, nreg, tagoff, keep=None):
    L, X = a.label('Lg'), a.label('Lgx')
    a(f"v_lshlrev_b32 v12, 2, v0\ns_add_u32 s30, s{S_B}, {tagoff}")
    a(f"{L}:\ns_add_u32 s{S_SPIN}, s{S_SPIN}, 1\ns_cmp_gt_u32 s{S_SPIN}, {SPIN_MAX}\ns_cbranch_scc1 {X}\ns_mov_b32 s31, {base}")
    for i in range(nreg):
        if i: a("s_add_u32 s31, s31, 4096")
        a(f"buffer_load_dword v{8+i}, v12, {srd(WS)}, s31 offen sc1")
    a("s_waitcnt vmcnt(0)")
    for i in range(nreg): a(f"v_subrev_u32 v{8+i}, s30, v{8+i}")
    if nreg == 4: a("v_max3_u32 v14, v8, v9, v10\nv_max_u32 v14, v14, v11")
    a(f"v_cmp_lt_u32 vcc, 15, v{14 if nreg == 4 else 8}\ns_cbranch_vccnz {L}\n{X}:")
    a.vm = []
def publish_global(a, soff, tagoff):
    a(f"s_add_u32 s30, s{S_B}, {tagoff}\nv_mov_b32 v14, s30\nv_mov_b32 v15, 0\ns_mov_b64 exec, 1")
    a.v(f"buffer_store_dword v14, v15, {srd(WS)}, s{soff} offen sc1", 'flag')
    a("s_mov_b64 exec, -1")

STAMPS = WS_END
NST = 20
STAMP_ON = [False]
TM = "s_memtime" if "c" in OPT else "s_memrealtime"
def stamp(a, i, l=None, grp='t'):
    if STAMP_ON[0] != grp: return
    if l is None: a(f"{TM} s[{60+2*i}:{61+2*i}]"); return
    sk = a.label('Lst')
    a(f"s_cmp_lg_u32 s{S_L}, {l}\ns_cbranch_scc1 {sk}\n{TM} s[{60+2*i}:{61+2*i}]\n{sk}:")
def stamp_head(a):
    if STAMP_ON[0]:
        for i in range(2*NST): a(f"s_mov_b32 s{60+i}, 0")
        a(f"{TM} s[60:61]\ns_mov_b32 s58, s2")
def stamp_tail(a):
    if not STAMP_ON[0]: return
    a(f"s_waitcnt vmcnt(0) lgkmcnt(0)\n{TM} s[{60+2*NST-2}:{60+2*NST-1}]\ns_waitcnt lgkmcnt(0)\ns_mov_b64 exec, 1")
    a(f"s_lshl_b32 s58, s58, 2\ns_add_u32 s58, s58, s{S_W}\ns_mul_i32 s58, s58, {NST*4}\ns_add_u32 s58, s58, {STAMPS}\nv_mov_b32 v1, s58")
    for i in range(NST): a(f"v_mov_b32 v2, s{60+2*i}\nglobal_store_dword v1, v2, s[{WS}:{WS+1}] offset:{4*i}")
```

```python
from p_common import *
from p_att import dma7, wd
X = 116
HS = 31 if 'H' in OPT else 3
SLOT = [56*KB, 84*KB, 112*KB, 0, 28*KB, 56*KB, 84*KB]
def gu_epi(acc, C, T, MU, RS, NL):
    o = []
    for r in range(16): o.append(f"v_fma_f32 v{acc+r}, -v{MU}, v{C+r}, v{acc+r}")
    for r in range(8): o.append(f"v_mul_f32 v{acc+r}, v{NL}, v{acc+r}")
    for r in range(8): o += [f"v_exp_f32 v{acc+r}, v{acc+r}", f"v_mul_f32 v{acc+8+r}, v{RS}, v{acc+8+r}"]
    for r in range(8): o.append(f"v_add_f32 v{acc+r}, 1.0, v{acc+r}")
    for r in range(8): o.append(f"v_rcp_f32 v{acc+r}, v{acc+r}")
    for r in range(8): o.append(f"v_mul_f32 v{acc+8+r}, v{acc+r}, v{acc+8+r}")
    for i in range(4): o.append(f"v_cvt_pk_bf16_f32 v{T+i}, v{acc+8+2*i}, v{acc+9+2*i}")
    return o
def gu(a):
    ACC, A, C, T, D = 16, 48, 80, 96, 6
    MU, RS, NL = 6, 7, 9
    a(f"s_lshl_b32 s24, s{S_W}, 4\ns_mov_b32 s{S_MASK}, 0x3fff\ns_mov_b32 s{S_MASK+1}, 0\ns_lshl_b64 s[{S_MASK}:{S_MASK+1}], s[{S_MASK}:{S_MASK+1}], s24")
    a(f"s_add_u32 s27, s{S_GTB}, s{S_W}\ns_mul_i32 s24, s27, {28*KB}\ns_add_u32 s24, s24, {XB}")
    a(f"s_mul_i32 s25, s27, {14*256}\ns_add_u32 s25, s25, {SB}")
    a(f"s_mul_i32 s27, s27, {112*KB}\ns_mul_i32 s26, s{S_JJ}, {7*KB}\ns_add_u32 s27, s27, s26\ns_add_u32 s27, s27, {HO}")
    a(f"v_add_u32 v3, 0x10000, v0\nv_add_u32 v4, 0x20000, v0\nv_lshlrev_b32 v5, 4, v2\nv_add_u32 v5, 0x20000, v5")
    seq = [(t, k) for t in range(7) for k in range(28)]
    def rd(n):
        t, k = seq[n]
        if k == 0 and t >= 2:
            if t >= 4: a.wait(('T', t))
            a("s_barrier")
            if t < 4:
                for f in dma7(a, t+3, SLOT[t+3], ('T', t+3)): f()
            if t == 6:
                sk = a.label('Lnw')
                a(f"s_or_b32 s30, s{S_Q}, s{S_L}\ns_cbranch_scc1 {sk}\ns_mul_i32 s30, s{S_W}, {14*KB}\ns_add_u32 s30, s30, {WKF}")
                for i in range(14):
                    if i and i % 4 == 0: a("s_add_u32 s30, s30, 4096")
                    a(f"buffer_load_dwordx4 {R(256+224+4*i if i < 8 else 232+4*(i-8), 4)}, v0, {srd(WS)}, s30 offen offset:{(i%4)*KB}")
                a(f"{sk}:")
        off = SLOT[t] + k*KB
        a(f"ds_read_b128 {vr(A+4*(n%8),4)}, v{(0, 3, 4)[off >> 16]} offset:{off % 65536}")
    for n in range(D): rd(n)
    for f in dma7(a, 3, SLOT[3], ('T', 3)): f()
    await_(a); next_tag(a)
    stamp(a, 8, 0); stamp(a, 16, 1); stamp(a, 1, 0, 'f')
    ldn(a, X, 28, 24, lambda i: ('x', i), SL)
    ld_stats(a, 100, 25, 8, 'stat')
    for f in dma7(a, 4, SLOT[4], ('T', 4)): f()
    pf = [wd(a, k, fi) for k in range(16, 28) for fi in range(2)]
    epi = []
    cs_at = -100
    for n, (t, k) in enumerate(seq):
        if t == 0 and k % 2 == 0: a.wait(('x', k+1))
        a(f"s_waitcnt lgkmcnt({min(D-1, len(seq)-1-n) + (4 if 1 <= n - cs_at <= D else 0)})")
        acc = ACC + 16*(t & 1)
        a(f"{MF} {vr(acc,16)}, {vr(A+4*(n%8),4)}, {R(X+4*k,4)}, {vr(acc,16) if k else 0}")
        if k == 27: stamp(a, 2+t, 0, 'f')
        if t == 0 and k == 27:
            a.wait('stat')
            fin_stats(a, 100, MU, RS, 10)
            a(f"v_mul_f32 v{NL}, {fhex(-LOG2E)}, v{RS}")
        if n + D < len(seq): rd(n + D)
        if t >= 1 and n % 4 == 0 and pf: pf.pop(0)()
        if k == 0 and t > 0:
            epi = gu_epi(ACC + 16*((t-1) & 1), C, T, MU, RS, NL)
        if k >= D-1 and epi:
            for _ in range(3):
                if epi: a(epi.pop(0))
            if not epi:
                assert k == 27
                st1(a, T, 27, 0); a("s_add_u32 s27, s27, 1024")
        if k == 26:
            for q in range(4): a(f"ds_read_b128 {vr(C+4*q,4)}, v5 offset:{L_CS - 131072 + t*128 + 32*q}")
            cs_at = n
    assert not pf
    a("s_waitcnt lgkmcnt(0)\ns_nop 10")
    for i in gu_epi(ACC, C, T, MU, RS, NL): a(i)
    st1(a, T, 27, 0)
    stamp(a, 9, 0, 'f')
    publish(a)
    stamp(a, 9, 0); stamp(a, 10, 0, 'f')
def down(a, pro1_label, end):
    RING, DEP, ACC, RES = 96, 17, 16, 80
    skip, last = a.label('Lskip'), a.label('Llast')
    next_tag(a)
    a(f"s_cmp_ge_u32 s{S_JJ}, 14\ns_cbranch_scc1 {skip}\ns_sub_u32 s{S_TAG}, s{S_TAG}, 1")
    a(f"s_lshl_b32 s24, s{S_W}, 4\ns_lshl_b32 s25, s{S_DTP}, 1\ns_add_u32 s24, s24, s25\ns_mov_b32 s{S_MASK}, 0x3333\ns_mov_b32 s{S_MASK+1}, 0")
    a(f"s_lshl_b64 s[{S_MASK}:{S_MASK+1}], s[{S_MASK}:{S_MASK+1}], s24\ns_add_u32 s44, s{S_GTB}, s25")
    a(f"s_lshr_b32 s45, s{S_W}, 1\ns_add_u32 s45, s45, s44\ns_and_b32 s46, s{S_W}, 1\ns_lshl_b32 s47, s{S_DFP}, 1\ns_add_u32 s46, s46, s47")
    a(f"s_mul_i32 s47, s45, {28*KB}\ns_lshl_b32 s48, s46, 11\ns_add_u32 s47, s47, s48\ns_add_u32 s24, s47, {XB}")
    ldn(a, RES, 2, 24, 'res', SL)
    a(f"s_mul_i32 s24, s44, {112*KB}\ns_mul_i32 s25, s{S_W}, {28*KB}\ns_add_u32 s24, s24, s25\ns_add_u32 s24, s24, {HO}\ns_add_u32 s25, s24, {112*KB}")
    await_(a); next_tag(a)
    stamp(a, 10, 0); stamp(a, 17, 1); stamp(a, 11, 0, 'f')
    def ld(k):
        if k and k % 4 == 0: a("s_add_u32 s24, s24, 4096\ns_add_u32 s25, s25, 4096")
        for ti in range(2): ld1(a, RING + 8*(k % DEP) + 4*ti, 24+ti, (k % 4)*KB, (k, ti), 0, SL)
    for k in range(DEP): ld(k)
    for k in range(28):
        for ti in range(2):
            a.wait((k, ti))
            for fi in range(2):
                acc = ACC + 16*(2*ti+fi)
                a(f"{MF} {vr(acc,16)}, {R(256+8*k+4*fi,4)}, {vr(RING+8*(k%DEP)+4*ti,4)}, {vr(acc,16) if k else 0}")
        if k + DEP < 28: ld(k + DEP)
        if k in (0, 9, 18, 27): stamp(a, 12 + k//9, 0, 'f')
    a(f"s_lshl_b32 s24, s{S_W}, 14\nv_add_u32 v5, s24, v0\ns_lshl_b32 s24, s{S_W}, 12\nv_add_u32 v6, s24, v0\ns_nop 7")
    for i in range(16): a(f"ds_write_b128 v5, {vr(ACC+4*i,4)} offset:{i*KB}")
    a("s_waitcnt lgkmcnt(0)\ns_barrier")
    for w in range(4):
        for q in range(4): a(f"ds_read_b128 {vr(ACC+16*w+4*q,4)}, v6 offset:{w*16*KB+q*KB}")
    a(f"s_add_u32 s24, s47, {XA}\ns_mul_i32 s25, s45, {14*256}\ns_lshl_b32 s48, s46, 8\ns_add_u32 s25, s25, s48\ns_add_u32 s25, s25, {SA}")
    for w in range(1, 4):
        a(f"s_waitcnt lgkmcnt({12-4*w})")
        for r in range(16): a(f"v_add_f32 v{ACC+r}, v{ACC+r}, v{ACC+16*w+r}")
    add_resid(a, ACC, RES, 32)
    a(f"s_cmp_lg_u32 s{S_L}, 0\ns_cbranch_scc1 {last}")
    stamp(a, 16, 0, 'f')
    store_x(a, ACC, RES, 32, 24, 25, 5)
    publish(a)
    stamp(a, 11); stamp(a, 17, 0, 'f')
    a(f"s_barrier\n{skip}:\ns_cmp_lg_u32 s{S_L}, 0\ns_cbranch_scc1 {end}")
    a(f"s_mov_b32 s{S_L}, 1\ns_add_u32 s{S_LB}, s{S_LB}, {LSTR}\ns_branch {pro1_label}")
    a(f"{last}:\ns_mul_i32 s24, s45, {32*896}\ns_lshl_b32 s25, s46, 6\ns_add_u32 s24, s24, s25")
    store_out(a, RES, 24, 5)
    a(f"s_branch {end}")
```

```python
from p_common import *
def load_srd(a, off, nb, s=SRD_A):
    a(f"s_load_dwordx2 s[{s}:{s+1}], s[0:1], {off}\ns_mov_b32 s{s+2}, {nb}\ns_mov_b32 s{s+3}, 0x20000")
def xhalf(a, v, t):
    a(f"v_mov_b32 v{t}, v{v}\ns_nop 1\nv_permlane32_swap_b32 v{t}, v{v}\ns_nop 1\nv_add_f32 v{v}, v{v}, v{t}")
def tr_addr(a, v, rowb, sbase):
    a(f"v_bfe_u32 v8, v1, 2, 2\nv_lshl_add_u32 v8, v2, 2, v8\nv_mul_u32_u24 v{v}, {rowb}, v8\nv_lshrrev_b32 v8, 4, v1\nv_lshl_add_u32 v{v}, v8, 5, v{v}")
    a(f"v_and_b32 v8, 3, v1\nv_lshl_add_u32 v{v}, v8, 3, v{v}\nv_add_u32 v{v}, s{sbase}, v{v}")
PK = 16
def unit(a, rowb, offs, dsts, v_dst, cs=None, zero_odd=False):
    n = len(offs)
    a(f"v_lshrrev_b32 v4, 6, v0\nv_mul_u32_u24 v4, {rowb}, v4\nv_and_b32 v8, 48, v0\nv_add_u32 v4, v4, v8\ns_lshl_b32 s47, s{S_W}, 14\ns_waitcnt lgkmcnt(0)")
    for i in range(n):
        a(f"s_add_u32 s46, s44, {offs[i]}\ns_add_u32 m0, s47, {i*KB}\ns_nop 0")
        a.v(f"buffer_load_dwordx4 v4, {srd(SRD_A)}, s46 offen lds", i)
    tr_addr(a, 9, 64, 47)
    if cs: a("v_mov_b32 v10, 0\nv_mov_b32 v11, 0\nv_mov_b32 v12, 0x3f803f80")
    for i in range(n + 1):
        if i < n:
            a.wait(i)
            if i in (0, n-1): stamp(a, 2 + (i > 0), None, 'p')
            a(f"ds_read_b64_tr_b16 {vr(PK+4*i,2)}, v9 offset:{i*KB}\nds_read_b64_tr_b16 {vr(PK+4*i+2,2)}, v9 offset:{i*KB+512}")
        if i:
            j = i - 1
            a(f"s_add_u32 s46, s45, {dsts[j]}\ns_waitcnt lgkmcnt({2 if i < n else 0})")
            if zero_odd and j & 1: a(f"s_mov_b32 exec_lo, 0\nv_mov_b32 v{PK+4*j+2}, 0\nv_mov_b32 v{PK+4*j+3}, 0\ns_mov_b32 exec_lo, -1")
            st1(a, PK+4*j, 46, 0, 'st', v_dst, SC)
            if cs:
                for d in range(4): a(f"v_dot2c_f32_bf16 v{10+(d&1)}, v{PK+4*j+d}, v12")
    stamp(a, 4, None, 'p')
    if cs:
        a("s_nop 2\nv_add_f32 v10, v10, v11"); xhalf(a, 10, 11)
        a(f"s_lshl_b32 s30, s{S_W}, 7\nv_lshl_add_u32 v11, v1, 2, s30\nv_add_u32 v11, {L_MISC}, v11\nds_write_b32 v11, v10\ns_waitcnt lgkmcnt(0)\ns_barrier")
        a(f"v_lshlrev_b32 v11, 2, v1\nv_add_u32 v11, {L_MISC}, v11\nds_read2_b32 v[8:9], v11 offset1:32\nds_read2_b32 v[10:11], v11 offset0:64 offset1:96")
        a("s_waitcnt lgkmcnt(0)\nv_add_f32 v8, v8, v9\nv_add_f32 v10, v10, v11\nv_add_f32 v10, v10, v8")
        skip = a.label('Lcs')
        a(f"s_cmp_lg_u32 s{S_W}, 0\ns_cbranch_scc1 {skip}\ns_mov_b32 exec_hi, 0")
        a(f"buffer_store_dword v10, v{cs}, {srd(WS)}, s48 offen sc1\ns_mov_b32 exec_hi, -1\n{skip}:")
XK, AK, AV = 16, 48, 64
def kv_core(a, wkv, s_dst):
    a("v_mul_f32 v8, v6, v7\nv_sub_f32 v8, 0, v8")
    for i in range(7):
        for d in range(4):
            r = XK + 4*i + d
            a(f"v_lshlrev_b32 v9, 16, v{r}\nv_and_b32 v10, 0xffff0000, v{r}\nv_fma_f32 v9, v9, v7, v8\nv_fma_f32 v10, v10, v7, v8\nv_cvt_pk_bf16_f32 v{r}, v9, v10")
        a("s_nop 1")
        a(f"{MF} {vr(AK,16)}, {R(wkv(i),4)}, {vr(XK+4*i,4)}, {vr(AK,16) if i else 0}")
        a(f"{MF} {vr(AV,16)}, {vr(XK+4*i,4)}, {R(wkv(7+i),4)}, {vr(AV,16) if i else 0}")
    a(f"s_lshl_b32 s30, s{S_W}, 13\ns_add_u32 s30, s30, {L_GU}\nv_add_u32 v8, s30, v0\ns_lshl_b32 s30, s{S_W}, 11\ns_add_u32 s30, s30, {L_GU}\nv_add_u32 v9, s30, v0")
    a(f"v_mov_b32 v10, 1.0\nv_cmp_eq_u32 vcc, 28, v1\ns_cmp_ge_u32 s{S_W}, 2\ns_cselect_b32 s30, 0, 1.0\nv_mov_b32 v11, s30\nv_cndmask_b32 v10, v11, v10, vcc")
    a(f"s_cselect_b32 s44, 0xf0000000, 0\ns_mov_b32 s45, s44\ns_mov_b32 s46, s44\ns_cmp_eq_u32 s{S_W}, 1\ns_cselect_b32 s47, -1, s44\ns_nop 4")
    for q in range(8): a(f"ds_write_b128 v8, {vr(AK+4*q,4)} offset:{q*KB}")
    a("s_waitcnt lgkmcnt(0)\ns_barrier")
    for w in range(4):
        for q in range(2): a(f"ds_read_b128 {vr(16+8*w+4*q,4)}, v9 offset:{w*8*KB+q*KB}")
    for w in range(1, 4):
        a(f"s_waitcnt lgkmcnt({6-2*w})")
        for r in range(8): a(f"v_add_f32 v{16+r}, v{16+r}, v{16+8*w+r}")
    for r in range(8): a(f"v_cndmask_b32 v{16+r}, v{16+r}, v10, s[{44+2*(r>>2)}:{45+2*(r>>2)}]")
    for i in range(4): a(f"v_cvt_pk_bf16_f32 v{24+i}, v{16+2*i}, v{17+2*i}")
    st1(a, 24, s_dst, 0, 'st', 0, SC)
def prep(a, done):
    Lup, Lq, Lo, Ld, Lx = [a.label('Lprep') for _ in range(5)]
    for lim, lab in ((192, Lx), (191, done), (135, Ld), (128, Lo), (112, Lq), (56, Lup)):
        a(f"s_cmp_ge_u32 s2, {lim}\ns_cbranch_scc1 {lab}")
    vm0 = list(a.vm)
    Lgu = a.label('Lprep')
    load_srd(a, 48, 448*3584); a(f"s_mov_b32 s49, s2\ns_mov_b32 s50, 0\ns_branch {Lgu}\n{Lup}:")
    load_srd(a, 56, 448*3584); a(f"s_sub_u32 s49, s2, 56\ns_mov_b32 s50, 64\n{Lgu}:")
    a(f"s_mul_i32 s44, s{S_W}, {7*16*3584}\ns_lshl_b32 s45, s49, 6\ns_add_u32 s44, s44, s45")
    a(f"s_mul_i32 s45, s49, {2*28*KB}\ns_mul_i32 s46, s{S_W}, {7*KB}\ns_add_u32 s45, s45, s46\ns_add_u32 s45, s45, {WGU}")
    a(f"v_lshrrev_b32 v6, 4, v1\nv_and_b32 v7, 15, v1\nv_mul_u32_u24 v5, {28*KB}, v6\nv_lshl_add_u32 v5, v2, 9, v5\nv_lshl_add_u32 v5, v7, 4, v5")
    a(f"v_lshlrev_b32 v6, 7, v6\nv_lshl_add_u32 v6, v7, 2, v6\nv_add_u32 v6, s50, v6\ns_lshl_b32 s50, s50, 2\nv_add_u32 v5, s50, v5")
    a(f"s_lshl_b32 s48, s49, 8\ns_add_u32 s48, s48, {CS + 16*128}")
    unit(a, 3584, [16*3584*i for i in range(7)], [KB*i for i in range(7)], 5, 6); a(f"s_branch {done}")
    a.vm = list(vm0)
    a(f"{Lq}:\ns_sub_u32 s49, s2, 112"); load_srd(a, 8, 448*896)
    a(f"s_mul_i32 s44, s{S_W}, {7*16*896}\ns_mul_i32 s45, s49, 56\ns_add_u32 s44, s44, s45")
    a(f"s_mul_i32 s45, s49, {28*KB}\ns_mul_i32 s46, s{S_W}, {7*KB}\ns_add_u32 s45, s45, s46\ns_add_u32 s45, s45, {WQF}")
    a(f"v_lshlrev_b32 v6, 2, v1\ns_lshl_b32 s48, s49, 7\ns_add_u32 s48, s48, {CS}")
    unit(a, 896, [16*896*i for i in range(7)], [KB*i for i in range(7)], 0, 6); a(f"s_branch {done}")
    a.vm = list(vm0)
    a(f"{Lo}:\ns_sub_u32 s49, s2, 128"); load_srd(a, 32, 448*896)
    a(f"s_mul_i32 s44, s{S_W}, {4*28*896}\ns_lshl_b32 s45, s49, 7\ns_add_u32 s44, s44, s45")
    a(f"s_lshl_b32 s45, s49, 16\ns_lshl_b32 s46, s{S_W}, 13\ns_add_u32 s45, s45, s46\ns_add_u32 s45, s45, {WOF}")
    unit(a, 896, [(28*((i >> 1) & 3) + 16*(i & 1))*896 + 64*(i >> 3) for i in range(16)], [(i >> 3)*32*KB + (i & 7)*KB for i in range(16)], 0, None, True)
    a(f"s_branch {done}")
    a.vm = list(vm0)
    a(f"{Ld}:\ns_sub_u32 s49, s2, 135"); load_srd(a, 64, 1792*896)
    a(f"s_lshr_b32 s50, s49, 1\ns_mul_i32 s50, s50, 9363\ns_lshr_b32 s50, s50, 16\ns_mul_i32 s51, s50, 14\ns_sub_u32 s51, s49, s51")
    a(f"s_lshl_b32 s50, s50, 2\ns_add_u32 s50, s50, s{S_W}\ns_mul_i32 s44, s50, {7*16*896}\ns_lshl_b32 s45, s51, 6\ns_add_u32 s44, s44, s45")
    a(f"s_mul_i32 s45, s51, {112*KB}\ns_mul_i32 s46, s50, {7*KB}\ns_add_u32 s45, s45, s46\ns_add_u32 s45, s45, {WDF}")
    unit(a, 896, [16*896*i for i in range(7)], [KB*i for i in range(7)], 0); a(f"s_branch {done}")
    a.vm = list(vm0)
    a(f"{Lx}:\ns_sub_u32 s49, s2, 192"); load_srd(a, 0, 2048*896); load_srd(a, 16, 448*56, SRD_B); load_srd(a, 24, 448*56, SRD_KV)
    a(f"v_mul_u32_u24 v4, 896, v1\nv_lshl_add_u32 v4, v2, 4, v4\ns_mul_i32 s44, s49, {32*896}\ns_mul_i32 s45, s{S_W}, 224\ns_add_u32 s44, s44, s45")
    a(f"s_mul_i32 s45, s{S_W}, {7*896}\ns_mul_i32 s47, s{S_W}, {14*KB}\ns_waitcnt lgkmcnt(0)")
    for i in range(7): ld1(a, XK+4*i, 44, 32*i, 'x', 4, '', SRD_A)
    for m, s in enumerate((SRD_B, SRD_KV)):
        for i in range(7):
            if i % 4 == 0: a(f"s_add_u32 s46, s45, {i*KB}\ns_add_u32 m0, s47, {(7*m+i)*KB}\ns_nop 0")
            a.v(f"buffer_load_dwordx4 v0, {srd(s)}, s46 offen offset:{(i%4)*KB} lds", 'w')
    tr_addr(a, 5, 56, 47)
    a(f"s_mul_i32 s44, s49, {28*KB}\ns_mul_i32 s45, s{S_W}, {7*KB}\ns_add_u32 s44, s44, s45\ns_add_u32 s44, s44, {XA}")
    a("v_mov_b32 v6, 0\nv_mov_b32 v7, 0\nv_mov_b32 v12, 0x3f803f80")
    a.wait('x'); stamp(a, 5, None, 'p')
    for i in range(7):
        r = XK + 4*i
        a(f"v_permlane32_swap_b32 v{r}, v{r+2}\nv_permlane32_swap_b32 v{r+1}, v{r+3}")
        if i == 4: a("s_add_u32 s44, s44, 4096")
        a("s_nop 0")
        st1(a, r, 44, (i % 4)*KB, 'st', 0, SC)
        for d in range(4): a(f"v_dot2c_f32_bf16 v6, v{r+d}, v12\nv_dot2c_f32_bf16 v7, v{r+d}, v{r+d}")
    a("s_nop 2"); xhalf(a, 6, 8); xhalf(a, 7, 8)
    a(f"s_lshl_b32 s30, s{S_W}, 8\nv_lshl_add_u32 v9, v1, 3, s30\nv_add_u32 v9, {L_MISC}, v9\ns_mov_b32 exec_hi, 0\nds_write_b64 v9, v[6:7]\ns_mov_b32 exec_hi, -1")
    a(f"s_mul_i32 s44, s49, {14*256}\ns_lshl_b32 s45, s{S_W}, 10\ns_add_u32 s44, s44, s45\ns_add_u32 s44, s44, {SA}")
    a("v_lshrrev_b32 v8, 1, v0\nv_mov_b32 v10, 0\nv_mov_b32 v11, 0\ns_mov_b32 exec_lo, 0\nv_mov_b32 v6, 0\nv_mov_b32 v7, 0\ns_mov_b32 exec_lo, -1")
    a.v(f"buffer_store_dwordx2 v[6:7], v8, {srd(WS)}, s44 offen sc1")
    sk = a.label('Lsz')
    a(f"s_cmp_eq_u32 s{S_W}, 3\ns_cbranch_scc1 {sk}\nbuffer_store_dwordx2 v[10:11], v8, {srd(WS)}, s44 offen offset:512 sc1\n{sk}:")
    a.wait('w'); stamp(a, 6, None, 'p')
    W = 132
    for i in range(14):
        o = (i // 7)*7*KB + (i % 7)*896
        a(f"ds_read_b64_tr_b16 {vr(W+4*i,2)}, v5 offset:{o}\nds_read_b64_tr_b16 {vr(W+4*i+2,2)}, v5 offset:{o+448}")
    a(f"s_waitcnt lgkmcnt(0)\ns_barrier\nv_lshlrev_b32 v9, 3, v1\nv_add_u32 v9, {L_MISC}, v9")
    for w in range(4): a(f"ds_read_b64 {vr(100+2*w,2)}, v9 offset:{256*w}")
    sk = a.label('Lkw')
    a(f"s_cmp_lg_u32 s49, 0\ns_cbranch_scc1 {sk}\ns_add_u32 s44, s47, {WKF}")
    for i in range(14):
        if i and i % 4 == 0: a("s_add_u32 s44, s44, 4096")
        a(f"buffer_store_dwordx4 {vr(W+4*i,4)}, v0, {srd(WS)}, s44 offen offset:{(i%4)*KB} sc1")
    a(f"{sk}:\ns_waitcnt lgkmcnt(0)\nv_add_f32 v100, v100, v102\nv_add_f32 v101, v101, v103\nv_add_f32 v104, v104, v106\nv_add_f32 v105, v105, v107")
    a("v_add_f32 v6, v100, v104\nv_add_f32 v7, v101, v105")
    for i in stats_tail(6, 7): a(i)
    a(f"s_lshl_b32 s48, s49, 12\ns_lshl_b32 s45, s{S_W}, 10\ns_add_u32 s48, s48, s45\ns_add_u32 s48, s48, {KVO}")
    stamp(a, 7, None, 'p')
    kv_core(a, lambda i: W + 4*i, 48)
    stamp(a, 8, None, 'p')
```

```python
import sys
from p_common import *
import p_prep, p_att, p_ffn
NAME = 'interleave_layers__grouped_kv_mqa__glu_gated_glu__prompt_kernel'
def roles(a, force_slow):
    a("s_mov_b32 s25, 0")
    for x in range(8):
        for i in range(4): a(f"v_cmp_eq_u32 s[{44+2*i}:{45+2*i}], {x}, v{8+i}")
        a("s_nop 0")
        for i in range(4): a(f"s_bcnt1_i32_b64 s{44+2*i}, s[{44+2*i}:{45+2*i}]")
        a("s_add_u32 s44, s44, s46\ns_add_u32 s48, s48, s50\ns_add_u32 s44, s44, s48\ns_xor_b32 s44, s44, 32\ns_or_b32 s25, s25, s44")
    a("v_lshrrev_b32 v12, 4, v0")
    for i in range(4):
        a(f"v_cmp_eq_u32 s[{44+2*i}:{45+2*i}], s57, v{8+i}\nv_cmp_gt_u32 vcc, s2, v12\nv_add_u32 v12, 64, v12\ns_nop 0\ns_and_b64 vcc, vcc, s[{44+2*i}:{45+2*i}]\ns_bcnt1_i32_b64 s{44+2*i}, vcc")
    a("s_add_u32 s44, s44, s46\ns_add_u32 s48, s48, s50\ns_add_u32 s44, s44, s48\ns_lshl_b32 s44, s44, 3\ns_or_b32 s44, s44, s57\ns_or_b32 s24, s2, 0x100")
    if force_slow: a("s_mov_b32 s25, 1")
    a("s_cmp_eq_u32 s25, 0\ns_cselect_b32 s24, s44, s24")
def kernel(force_slow=False):
    a = A2()
    end, fin, pdone, again, retry, p1, l0 = [a.label(x) for x in ('Lend', 'Lfin', 'Lpdone', 'Lagain', 'Lretry', 'Lpro', 'Lfirst')]
    a(f"s_cmp_ge_u32 s2, 256\ns_cbranch_scc1 {fin}")
    stamp_head(a)
    a(f"s_load_dwordx2 s[{WS}:{WS+1}], s[0:1], 88\nv_lshrrev_b32 v1, 6, v0\nv_and_b32 v13, 63, v0\ns_getreg_b32 s57, hwreg(HW_REG_XCC_ID, 0, 4)")
    a(f"v_readfirstlane_b32 s{S_W}, v1\nv_and_b32 v1, 31, v13\nv_lshrrev_b32 v2, 5, v13\nv_lshlrev_b32 v0, 4, v13\nv_lshlrev_b32 v13, 2, v13")
    a(f"s_mov_b32 s{WS+2}, {WS_END}\ns_mov_b32 s{WS+3}, 0x20000\ns_mov_b32 s{S_SPIN}, 0\ns_mov_b32 s{S_L}, 0\ns_mov_b32 s{S_LB}, 0")
    a(f"s_getpc_b64 s[24:25]\nLpc:\ns_lshr_b32 s26, s2, 3\ns_lshl_b32 s26, s26, 2\ns_add_u32 s26, s26, s{S_W}\ns_lshl_b32 s26, s26, 10")
    a(f"v_add_u32 v8, s26, v0\nv_min_u32 v8, Lcode_end-Lpc-16, v8\nv_mov_b32 v9, s25\nv_add_co_u32 v8, vcc, s24, v8\nv_addc_co_u32 v9, vcc, 0, v9, vcc")
    a.v("global_load_dwordx4 v[244:247], v[8:9], off")
    a(f"s_waitcnt lgkmcnt(0)\ns_load_dword s56, s[{WS}:{WS+1}], {EPOCH}" if EPOCH < (1 << 20) else
      f"s_waitcnt lgkmcnt(0)\ns_mov_b32 s26, {EPOCH}\ns_load_dword s56, s[{WS}:{WS+1}], s26")
    p_prep.prep(a, pdone)
    a(f"{pdone}:"); load_out = p_prep.load_srd
    load_out(a, 72, 2048*896)
    a.wait0(); a("s_waitcnt lgkmcnt(0)")
    stamp(a, 1); stamp(a, 1, None, 'p')
    a(f"s_mul_i32 s{S_B}, s56, 0x9E3779B1\ns_add_u32 s{S_B}, s{S_B}, 0x5bd1e900\ns_andn2_b32 s{S_B}, s{S_B}, 0xff\ns_add_u32 s{S_TAG}, s{S_B}, 1\ns_barrier")
    w123, nepo, w0 = a.label('Lw'), a.label('Lne'), a.label('Lw')
    a(f"s_cmp_lg_u32 s{S_W}, 0\ns_cbranch_scc1 {w123}\ns_lshl_b32 s24, s2, 6\ns_add_u32 s24, s24, {GF1}\ns_add_u32 s{S_B}, s{S_B}, s57")
    publish_global(a, 24, 0x80)
    a(f"s_sub_u32 s{S_B}, s{S_B}, s57")
    poll_global(a, GF1, 4, 0x80)
    stamp(a, 9, None, 'p')
    roles(a, force_slow)
    a(f"v_mov_b32 v8, s24\nv_mov_b32 v9, {L_MISC+1024}\nds_write_b32 v9, v8\ns_cmp_lg_u32 s2, 0\ns_cbranch_scc1 {nepo}")
    a(f"s_add_u32 s56, s56, 1\nv_mov_b32 v14, s56\nv_mov_b32 v15, 0\ns_mov_b32 s25, {EPOCH}\ns_mov_b64 exec, 1\nbuffer_store_dword v14, v15, {srd(WS)}, s25 offen sc1\ns_mov_b64 exec, -1")
    a(f"{nepo}:\ns_waitcnt lgkmcnt(0)\ns_branch {w0}\n{w123}:")
    a(f"{w0}:\ns_barrier\nv_mov_b32 v9, {L_MISC+1024}\nds_read_b32 v8, v9\ns_waitcnt lgkmcnt(0)\nv_readfirstlane_b32 s24, v8\ns_nop 3")
    a(f"s_lshr_b32 s{S_MODE}, s24, 8\ns_and_b32 s25, s24, 7\ns_bfe_u32 s26, s24, 0x50003")
    a(f"s_lshr_b32 s{S_TB}, s26, 2\ns_lshl_b32 s27, s25, 3\ns_add_u32 s{S_TB}, s{S_TB}, s27\ns_and_b32 s{S_Q}, s26, 3\ns_and_b32 s{S_JJ}, s26, 15")
    a(f"s_and_b32 s{S_GTB}, s{S_TB}, 0x3c\ns_lshl_b32 s{S_FB}, s{S_GTB}, 6\ns_add_u32 s{S_FB}, s{S_FB}, {FL}")
    a(f"s_lshl_b32 s{S_FO}, s{S_JJ}, 2\ns_add_u32 s{S_FO}, s{S_FO}, s{S_W}\ns_lshl_b32 s{S_FO}, s{S_FO}, 2\ns_add_u32 s{S_FO}, s{S_FO}, s{S_FB}")
    a(f"s_cmp_ge_u32 s{S_JJ}, 7\ns_cselect_b32 s{S_DTP}, 1, 0\ns_cselect_b32 s27, 7, 0\ns_sub_u32 s{S_DFP}, s{S_JJ}, s27\ns_min_u32 s{S_DFP}, s{S_DFP}, 6")
    stamp(a, 2); stamp(a, 10, None, 'p')
    p_att.pro0(a)
    stamp(a, 3); stamp(a, 13, None, 'p')
    a(f"s_branch {l0}\n{p1}:")
    a.vm = []
    p_att.pro1(a)
    a(f"{l0}:\ns_mov_b32 s29, 0\n{again}:")
    pf = p_att.att_prefetch(a)
    p_att.main_loop(a, pf)
    stamp(a, 4, 0); stamp(a, 15, 1)
    p_att.finish(a, retry)
    publish(a)
    stamp(a, 5, 0)
    p_att.oproj(a)
    p_ffn.gu(a)
    p_ffn.down(a, p1, end)
    a(f"{retry}:\ns_waitcnt vmcnt(0)")
    p_att.max_pass(a)
    p_att.kv_first(a)
    a(f"s_mov_b32 s29, 1\ns_branch {again}\n{end}:")
    stamp_tail(a)
    a(f"{fin}:\ns_endpgm\nLcode_end:")
    return a.text()
if __name__ == '__main__':
    out = sys.argv[1]; opts = sys.argv[2] if len(sys.argv) > 2 else ''
    STAMP_ON[0] = 't' if 't' in opts else ('f' if 'f' in opts else ('p' if 'p' in opts else False))
    s = build_file([(NAME, kernel('s' in opts), 256, 256, 102)], [(NAME, 256, 256, LDS_SIZE)], single=True)
    open(out, 'w').write(s); assemble(out, NAME); print(len(s))
```

```python
from asmlib import *
import struct
KB = 1024
WQF = 0
WKF = WQF + 16*28*KB
WOF = WKF + 56*KB
WGU = WOF + 14*32*KB
WDF = WGU + 112*28*KB
CS  = WDF + 14*112*KB
ACT = CS + 17*KB
XA = XB = ACT; SA = SB = XA + 64*28*KB
HO = OO = SB + 64*14*256; OSTR = 112*KB
KVO = HO + 64*112*KB; LSTR = 64*4*KB
GF1 = KVO + 2*LSTR; GF2 = GF1 + 16*KB; FL = GF2 + 4*KB; EPOCH = FL + 8*KB
WS_END = EPOCH + KB
XF = [XA, XB, XA, XB]; KVF = [KVO, LSTR+KVO]; OF = [OO, OO]; HF = [HO, HO]
MF = "v_mfma_f32_32x32x16_bf16"
OOB = 0x40000000
LOG2E = 1.4426950408889634
QSCALE = (28 ** -0.5) * LOG2E
def fhex(x): return hex(struct.unpack('<I', struct.pack('<f', x))[0])
S_W, S_TB, S_Q, S_JJ, S_LB = 3, 4, 5, 6, 7
WS, SRD_A, SRD_B, SRD_KV = 8, 12, 16, 20
S_B, S_MODE, S_FB, S_FO, S_TAG, S_L, S_GTB, S_SPIN, S_DTP, S_DFP, S_MASK, S_G = 32, 33, 34, 35, 36, 37, 38, 39, 40, 41, 42, 44
import os
OPT = os.environ.get('OPT', '')
SC = ' sc1'
SO = ' sc1' if 'O' in OPT else ''
SL = '' if 'n' in OPT else ' sc1'
L_Q, L_GU, L_CS, L_W, L_KVR, L_TR, L_MISC, LDS_SIZE = 48*KB, 56*KB, 140*KB, 56*KB, 112*KB, 144*KB, 148*KB, 152*KB

class A2(Asm):
    def __init__(self):
        super().__init__(); self.vm = []
    def v(self, s, tag=None):
        self(s); self.vm.append(tag)
    def n_after(self, tag):
        idx = max(i for i, t in enumerate(self.vm) if t == tag)
        return len(self.vm) - 1 - idx
    def wait(self, tag, extra=''):
        n = self.n_after(tag)
        self(f"s_waitcnt vmcnt({min(n, 63)}){extra}")
    def wait0(self):
        self("s_waitcnt vmcnt(0)"); self.vm = []
def srd(b): return f"s[{b}:{b+3}]"
def ld1(a, dst, soff, imm, tag, voff=0, fl='', s=WS):
    a.v(f"buffer_load_dwordx4 {R(dst,4)}, v{voff}, {srd(s)}, s{soff} offen offset:{imm}{fl}", tag)
def ldn(a, dst, n, soff, tag, fl='', i0=0):
    for i in range(i0, i0+n):
        if i and i % 4 == 0: a(f"s_add_u32 s{soff}, s{soff}, 4096")
        ld1(a, dst + 4*i, soff, (i % 4)*KB, tag(i) if callable(tag) else tag, 0, fl)
def dman(a, n, soff, sm0, tag, fl='', i0=0):
    for i in range(i0, i0+n):
        if i % 4 == 0:
            if i: a(f"s_add_u32 s{soff}, s{soff}, 4096\ns_add_u32 s{sm0}, s{sm0}, 4096")
            a(f"s_mov_b32 m0, s{sm0}\ns_nop 0")
        a.v(f"buffer_load_dwordx4 v0, {srd(WS)}, s{soff} offen offset:{(i%4)*KB}{fl} lds", tag)
def st1(a, src, soff, imm, tag='st', voff=0, fl=''):
    a.v(f"buffer_store_dwordx4 {R(src,4)}, v{voff}, {srd(WS)}, s{soff} offen offset:{imm}{fl}", tag)
def ld_stats(a, dst, soff, vtmp, tag, fl=SL):
    a(f"v_mul_u32_u24 v{vtmp}, {7*256}, v2\nv_lshl_add_u32 v{vtmp}, v1, 3, v{vtmp}")
    for i in range(7):
        a.v(f"buffer_load_dwordx2 {vr(dst+2*i,2)}, v{vtmp}, {srd(WS)}, s{soff} offen offset:{i*256}{fl}", tag)
def stats_tail(mu, rs):
    return [f"v_mul_f32 v{mu}, {fhex(1/448)}, v{mu}", f"v_mul_f32 v{rs}, {fhex(1/448)}, v{rs}",
            f"v_fma_f32 v{rs}, -v{mu}, v{mu}, v{rs}", f"v_max_f32 v{rs}, 0, v{rs}", f"v_add_f32 v{rs}, {fhex(1e-5)}, v{rs}",
            f"v_rsq_f32 v{rs}, v{rs}", "s_nop 0"]
def fin_stats_list(src, mu, rs, t):
    o = []
    for i in (1, 3, 5): o += [f"v_add_f32 v{src+2*i}, v{src+2*i}, v{src+2*i+2}", f"v_add_f32 v{src+2*i+1}, v{src+2*i+1}, v{src+2*i+3}"]
    o += [f"v_add_f32 v{src}, v{src}, v{src+2}", f"v_add_f32 v{src+1}, v{src+1}, v{src+3}",
          f"v_add_f32 v{src+6}, v{src+6}, v{src+10}", f"v_add_f32 v{src+7}, v{src+7}, v{src+11}",
          f"v_add_f32 v{mu}, v{src}, v{src+6}", f"v_add_f32 v{rs}, v{src+1}, v{src+7}",
          f"v_mov_b32 v{t}, v{mu}", f"v_mov_b32 v{t+1}, v{rs}", "s_nop 1",
          f"v_permlane32_swap_b32 v{t}, v{mu}", f"v_permlane32_swap_b32 v{t+1}, v{rs}", "s_nop 1",
          f"v_add_f32 v{mu}, v{mu}, v{t}", f"v_add_f32 v{rs}, v{rs}, v{t+1}"]
    return o + stats_tail(mu, rs)
def fin_stats(a, src, mu, rs, t):
    for i in fin_stats_list(src, mu, rs, t): a(i)
def ld_cs(a, dst, soff, vtmp, tag):
    a(f"v_lshlrev_b32 v{vtmp}, 4, v2")
    for q in range(4): ld1(a, dst+4*q, soff, 32*q, tag, vtmp)
def add_resid(a, acc, res, t):
    for i in range(8):
        a(f"v_lshlrev_b32 v{t}, 16, v{res+i}\nv_and_b32 v{t+1}, 0xffff0000, v{res+i}")
        a(f"v_add_f32 v{acc+2*i}, v{acc+2*i}, v{t}\nv_add_f32 v{acc+2*i+1}, v{acc+2*i+1}, v{t+1}")
    for i in range(8): a(f"v_cvt_pk_bf16_f32 v{res+i}, v{acc+2*i}, v{acc+2*i+1}")
def store_x(a, acc, res, t, s_x, s_st, vtmp):
    st1(a, res, s_x, 0); st1(a, res+4, s_x, KB)
    a(f"v_add_f32 v{t}, v{acc}, v{acc+1}\nv_mul_f32 v{t+1}, v{acc}, v{acc}\nv_add_f32 v{t+2}, v{acc+2}, v{acc+3}\nv_mul_f32 v{t+3}, v{acc+1}, v{acc+1}")
    a(f"v_fmac_f32 v{t+1}, v{acc+2}, v{acc+2}\nv_fmac_f32 v{t+3}, v{acc+3}, v{acc+3}")
    for i in range(4, 16, 2):
        a(f"v_add_f32 v{t}, v{t}, v{acc+i}\nv_fmac_f32 v{t+1}, v{acc+i}, v{acc+i}\nv_add_f32 v{t+2}, v{t+2}, v{acc+i+1}\nv_fmac_f32 v{t+3}, v{acc+i+1}, v{acc+i+1}")
    a(f"v_add_f32 v{t}, v{t}, v{t+2}\nv_add_f32 v{t+1}, v{t+1}, v{t+3}\nv_lshlrev_b32 v{vtmp}, 3, v1")
    a(f"v_mov_b32 v{t+2}, v{t}\nv_mov_b32 v{t+3}, v{t+1}\ns_nop 1")
    a(f"v_permlane32_swap_b32 v{t+2}, v{t}\nv_permlane32_swap_b32 v{t+3}, v{t+1}\ns_nop 1")
    a(f"v_add_f32 v{t}, v{t}, v{t+2}\nv_add_f32 v{t+1}, v{t+1}, v{t+3}\ns_mov_b32 exec_hi, 0")
    a.v(f"buffer_store_dwordx2 {vr(t,2)}, v{vtmp}, {srd(WS)}, s{s_st} offen", 'st')
    a("s_mov_b32 exec_hi, -1")
def store_out(a, res, s_out, vtmp):
    a(f"v_mul_u32_u24 v{vtmp}, 896, v1\nv_lshl_add_u32 v{vtmp}, v2, 4, v{vtmp}")
    a(f"v_permlane32_swap_b32 v{res}, v{res+2}\nv_permlane32_swap_b32 v{res+1}, v{res+3}")
    a(f"v_permlane32_swap_b32 v{res+4}, v{res+6}\nv_permlane32_swap_b32 v{res+5}, v{res+7}")
    a.v(f"buffer_store_dwordx4 {vr(res,4)}, v{vtmp}, {srd(SRD_A)}, s{s_out} offen{SO}")
    a.v(f"buffer_store_dwordx4 {vr(res+4,4)}, v{vtmp}, {srd(SRD_A)}, s{s_out} offen offset:32{SO}")

def publish(a, tag='st'):
    slow, done = a.label('Lps'), a.label('Lpd')
    if tag: a.wait(tag)
    a(f"v_mov_b32 v14, s{S_TAG}\nv_mov_b32 v15, 0\ns_cmp_lg_u32 s{S_MODE}, 0\ns_cbranch_scc1 {slow}\ns_mov_b64 exec, 1")
    a.v(f"buffer_store_dword v14, v15, {srd(WS)}, s{S_FO} offen", 'flag')
    a(f"s_branch {done}\n{slow}:\ns_waitcnt vmcnt(0)\nbuffer_wbl2 sc1\ns_waitcnt vmcnt(0)\ns_mov_b64 exec, 1")
    a(f"buffer_store_dword v14, v15, {srd(WS)}, s{S_FO} offen sc1\n{done}:\ns_mov_b64 exec, -1")
SPIN_MAX = 1 << 20
def await_(a):
    L, X, F = a.label('Lw'), a.label('Lwx'), a.label('Lwf')
    a(f"s_mov_b64 exec, s[{S_MASK}:{S_MASK+1}]\n{L}:\ns_add_u32 s{S_SPIN}, s{S_SPIN}, 1\ns_cmp_gt_u32 s{S_SPIN}, {SPIN_MAX}\ns_cbranch_scc1 {X}")
    a(f"buffer_load_dword v14, v13, {srd(WS)}, s{S_FB} offen sc1\ns_waitcnt vmcnt(0)")
    a(f"v_subrev_u32 v14, s{S_TAG}, v14\nv_cmp_lt_u32 vcc, 15, v14\ns_cbranch_vccnz {L}")
    a(f"{X}:\ns_mov_b64 exec, -1\ns_cmp_eq_u32 s{S_MODE}, 0\ns_cbranch_scc1 {F}\nbuffer_inv sc1\ns_waitcnt vmcnt(0)\n{F}:")
    a.vm = []
def next_tag(a): a(f"s_add_u32 s{S_TAG}, s{S_TAG}, 1")
def poll_global(a, base, nreg, tagoff, keep=None):
    L, X = a.label('Lg'), a.label('Lgx')
    a(f"v_lshlrev_b32 v12, 2, v0\ns_add_u32 s30, s{S_B}, {tagoff}")
    a(f"{L}:\ns_add_u32 s{S_SPIN}, s{S_SPIN}, 1\ns_cmp_gt_u32 s{S_SPIN}, {SPIN_MAX}\ns_cbranch_scc1 {X}\ns_mov_b32 s31, {base}")
    for i in range(nreg):
        if i: a("s_add_u32 s31, s31, 4096")
        a(f"buffer_load_dword v{8+i}, v12, {srd(WS)}, s31 offen sc1")
    a("s_waitcnt vmcnt(0)")
    for i in range(nreg): a(f"v_subrev_u32 v{8+i}, s30, v{8+i}")
    if nreg == 4: a("v_max3_u32 v14, v8, v9, v10\nv_max_u32 v14, v14, v11")
    a(f"v_cmp_lt_u32 vcc, 15, v{14 if nreg == 4 else 8}\ns_cbranch_vccnz {L}\n{X}:")
    a.vm = []
def publish_global(a, soff, tagoff):
    a(f"s_add_u32 s30, s{S_B}, {tagoff}\nv_mov_b32 v14, s30\nv_mov_b32 v15, 0\ns_mov_b64 exec, 1")
    a.v(f"buffer_store_dword v14, v15, {srd(WS)}, s{soff} offen sc1", 'flag')
    a("s_mov_b64 exec, -1")

STAMPS = WS_END
NST = 20
STAMP_ON = [False]
TM = "s_memtime" if "c" in OPT else "s_memrealtime"
def stamp(a, i, l=None, grp='t'):
    if STAMP_ON[0] != grp: return
    if l is None: a(f"{TM} s[{60+2*i}:{61+2*i}]"); return
    sk = a.label('Lst')
    a(f"s_cmp_lg_u32 s{S_L}, {l}\ns_cbranch_scc1 {sk}\n{TM} s[{60+2*i}:{61+2*i}]\n{sk}:")
def stamp_head(a):
    if STAMP_ON[0]:
        for i in range(2*NST): a(f"s_mov_b32 s{60+i}, 0")
        a(f"{TM} s[60:61]\ns_mov_b32 s58, s2")
def stamp_tail(a):
    if not STAMP_ON[0]: return
    a(f"s_waitcnt vmcnt(0) lgkmcnt(0)\n{TM} s[{60+2*NST-2}:{60+2*NST-1}]\ns_waitcnt lgkmcnt(0)\ns_mov_b64 exec, 1")
    if 'd' in OPT:
        a(f"s_lshl_b32 s58, s58, 2\ns_add_u32 s58, s58, s{S_W}\ns_cmp_lg_u32 s58, 0\ns_cbranch_scc1 Lnodbg\ns_load_dwordx2 s[24:25], s[0:1], 80\nv_mov_b32 v1, 0\ns_waitcnt lgkmcnt(0)")
        for n, i in enumerate((1, 2, 3, 4, 5, 7, 8, 9, 10, 11, 12, 14, 15, 16, 17, 19)):
            a(f"s_sub_u32 s58, s{60+2*i}, s60\nv_mov_b32 v2, s58\nglobal_store_dword v1, v2, s[24:25] offset:{4*n}")
        a("Lnodbg:")
        return
    a(f"s_lshl_b32 s58, s58, 2\ns_add_u32 s58, s58, s{S_W}\ns_mul_i32 s58, s58, {NST*4}\ns_add_u32 s58, s58, {STAMPS}\nv_mov_b32 v1, s58")
    for i in range(NST): a(f"v_mov_b32 v2, s{60+2*i}\nglobal_store_dword v1, v2, s[{WS}:{WS+1}] offset:{4*i}")
```

```python
from p_common import *
from p_att import dma7, wd
X = 116
HS = 31 if 'H' in OPT else 3
SLOT = [56*KB, 84*KB, 112*KB, 0, 28*KB, 56*KB, 84*KB]
def gu_epi(acc, C, T, MU, RS, NL):
    o = []
    for r in range(16): o.append(f"v_fma_f32 v{acc+r}, -v{MU}, v{C+r}, v{acc+r}")
    for r in range(8): o.append(f"v_mul_f32 v{acc+r}, v{NL}, v{acc+r}")
    for r in range(8): o += [f"v_exp_f32 v{acc+r}, v{acc+r}", f"v_mul_f32 v{acc+8+r}, v{RS}, v{acc+8+r}"]
    for r in range(8): o.append(f"v_add_f32 v{acc+r}, 1.0, v{acc+r}")
    for r in range(8): o.append(f"v_rcp_f32 v{acc+r}, v{acc+r}")
    for r in range(8): o.append(f"v_mul_f32 v{acc+8+r}, v{acc+r}, v{acc+8+r}")
    for i in range(4): o.append(f"v_cvt_pk_bf16_f32 v{T+i}, v{acc+8+2*i}, v{acc+9+2*i}")
    return o
def gu(a):
    ACC, A, C, T, D = 16, 48, 80, 96, 6
    MU, RS, NL = 6, 7, 9
    a(f"s_lshl_b32 s24, s{S_W}, 4\ns_mov_b32 s{S_MASK}, 0x3fff\ns_mov_b32 s{S_MASK+1}, 0\ns_lshl_b64 s[{S_MASK}:{S_MASK+1}], s[{S_MASK}:{S_MASK+1}], s24")
    a(f"s_add_u32 s27, s{S_GTB}, s{S_W}\ns_mul_i32 s24, s27, {28*KB}\ns_add_u32 s24, s24, {XB}")
    a(f"s_mul_i32 s25, s27, {14*256}\ns_add_u32 s25, s25, {SB}")
    a(f"s_mul_i32 s27, s27, {112*KB}\ns_mul_i32 s26, s{S_JJ}, {7*KB}\ns_add_u32 s27, s27, s26\ns_add_u32 s27, s27, {HO}")
    a(f"v_add_u32 v3, 0x10000, v0\nv_add_u32 v4, 0x20000, v0\nv_lshlrev_b32 v5, 4, v2\nv_add_u32 v5, 0x20000, v5")
    seq = [(t, k) for t in range(7) for k in range(28)]
    def rd(n):
        t, k = seq[n]
        if k == 0 and t >= 2:
            if t >= 4: a.wait(('T', t))
            a("s_barrier")
            if t < 4:
                for f in dma7(a, t+3, SLOT[t+3], ('T', t+3)): f()
            if t == 6:
                sk = a.label('Lnw')
                a(f"s_or_b32 s30, s{S_Q}, s{S_L}\ns_cbranch_scc1 {sk}\ns_mul_i32 s30, s{S_W}, {14*KB}\ns_add_u32 s30, s30, {WKF}")
                for i in range(14):
                    if i and i % 4 == 0: a("s_add_u32 s30, s30, 4096")
                    a(f"buffer_load_dwordx4 {R(256+224+4*i if i < 8 else 232+4*(i-8), 4)}, v0, {srd(WS)}, s30 offen offset:{(i%4)*KB}")
                a(f"{sk}:")
        off = SLOT[t] + k*KB
        a(f"ds_read_b128 {vr(A+4*(n%8),4)}, v{(0, 3, 4)[off >> 16]} offset:{off % 65536}")
    for n in range(D): rd(n)
    for f in dma7(a, 3, SLOT[3], ('T', 3)): f()
    await_(a); next_tag(a)
    stamp(a, 8, 0); stamp(a, 16, 1); stamp(a, 1, 0, 'f')
    ldn(a, X, 28, 24, lambda i: ('x', i), SL)
    ld_stats(a, 100, 25, 8, 'stat')
    for f in dma7(a, 4, SLOT[4], ('T', 4)): f()
    pf = [wd(a, k, fi) for k in range(16, 28) for fi in range(2)]
    epi = []
    cs_at = -100
    for n, (t, k) in enumerate(seq):
        if t == 0 and k % 2 == 0: a.wait(('x', k+1))
        a(f"s_waitcnt lgkmcnt({min(D-1, len(seq)-1-n) + (4 if 1 <= n - cs_at <= D else 0)})")
        acc = ACC + 16*(t & 1)
        a(f"{MF} {vr(acc,16)}, {vr(A+4*(n%8),4)}, {R(X+4*k,4)}, {vr(acc,16) if k else 0}")
        if k == 27: stamp(a, 2+t, 0, 'f')
        if t == 0 and k == 27:
            a.wait('stat')
            fin_stats(a, 100, MU, RS, 10)
            a(f"v_mul_f32 v{NL}, {fhex(-LOG2E)}, v{RS}")
        if n + D < len(seq): rd(n + D)
        if t >= 1 and n % 4 == 0 and pf: pf.pop(0)()
        if k == 0 and t > 0:
            epi = gu_epi(ACC + 16*((t-1) & 1), C, T, MU, RS, NL)
        if k >= D-1 and epi:
            for _ in range(3):
                if epi: a(epi.pop(0))
            if not epi:
                assert k == 27
                st1(a, T, 27, 0); a("s_add_u32 s27, s27, 1024")
        if k == 26:
            for q in range(4): a(f"ds_read_b128 {vr(C+4*q,4)}, v5 offset:{L_CS - 131072 + t*128 + 32*q}")
            cs_at = n
    assert not pf
    a("s_waitcnt lgkmcnt(0)\ns_nop 10")
    for i in gu_epi(ACC, C, T, MU, RS, NL): a(i)
    st1(a, T, 27, 0)
    stamp(a, 9, 0, 'f')
    publish(a)
    stamp(a, 9, 0); stamp(a, 10, 0, 'f')
def down(a, pro1_label, end):
    RING, DEP, ACC, RES = 96, 17, 16, 80
    skip, last, wb = a.label('Lskip'), a.label('Llast'), a.label('Lwb')
    next_tag(a)
    a(f"s_cmp_ge_u32 s{S_JJ}, 14\ns_cbranch_scc1 {skip}\ns_sub_u32 s{S_TAG}, s{S_TAG}, 1")
    a(f"s_lshl_b32 s24, s{S_W}, 4\ns_lshl_b32 s25, s{S_DTP}, 1\ns_add_u32 s24, s24, s25\ns_mov_b32 s{S_MASK}, 0x3333\ns_mov_b32 s{S_MASK+1}, 0")
    a(f"s_lshl_b64 s[{S_MASK}:{S_MASK+1}], s[{S_MASK}:{S_MASK+1}], s24\ns_add_u32 s44, s{S_GTB}, s25")
    a(f"s_lshr_b32 s45, s{S_W}, 1\ns_add_u32 s45, s45, s44\ns_and_b32 s46, s{S_W}, 1\ns_lshl_b32 s47, s{S_DFP}, 1\ns_add_u32 s46, s46, s47")
    a(f"s_mul_i32 s47, s45, {28*KB}\ns_lshl_b32 s48, s46, 11\ns_add_u32 s47, s47, s48\ns_add_u32 s24, s47, {XB}")
    ldn(a, RES, 2, 24, 'res', SL)
    a(f"s_mul_i32 s24, s44, {112*KB}\ns_mul_i32 s25, s{S_W}, {28*KB}\ns_add_u32 s24, s24, s25\ns_add_u32 s24, s24, {HO}\ns_add_u32 s25, s24, {112*KB}")
    await_(a); next_tag(a)
    stamp(a, 10, 0); stamp(a, 17, 1); stamp(a, 11, 0, 'f')
    def ld(k):
        if k and k % 4 == 0: a("s_add_u32 s24, s24, 4096\ns_add_u32 s25, s25, 4096")
        for ti in range(2): ld1(a, RING + 8*(k % DEP) + 4*ti, 24+ti, (k % 4)*KB, (k, ti), 0, SL)
    for k in range(DEP): ld(k)
    for k in range(28):
        for ti in range(2):
            a.wait((k, ti))
            for fi in range(2):
                acc = ACC + 16*(2*ti+fi)
                a(f"{MF} {vr(acc,16)}, {R(256+8*k+4*fi,4)}, {vr(RING+8*(k%DEP)+4*ti,4)}, {vr(acc,16) if k else 0}")
        if k + DEP < 28: ld(k + DEP)
        if k in (0, 9, 18, 27): stamp(a, 12 + k//9, 0, 'f')
    a(f"s_lshl_b32 s24, s{S_W}, 14\nv_add_u32 v5, s24, v0\ns_lshl_b32 s24, s{S_W}, 12\nv_add_u32 v6, s24, v0\ns_nop 7")
    for i in range(16): a(f"ds_write_b128 v5, {vr(ACC+4*i,4)} offset:{i*KB}")
    a("s_waitcnt lgkmcnt(0)\ns_barrier")
    for w in range(4):
        for q in range(4): a(f"ds_read_b128 {vr(ACC+16*w+4*q,4)}, v6 offset:{w*16*KB+q*KB}")
    a(f"s_add_u32 s24, s47, {XA}\ns_mul_i32 s25, s45, {14*256}\ns_lshl_b32 s48, s46, 8\ns_add_u32 s25, s25, s48\ns_add_u32 s25, s25, {SA}")
    for w in range(1, 4):
        a(f"s_waitcnt lgkmcnt({12-4*w})")
        for r in range(16): a(f"v_add_f32 v{ACC+r}, v{ACC+r}, v{ACC+16*w+r}")
    add_resid(a, ACC, RES, 32)
    a(f"s_cmp_lg_u32 s{S_L}, 0\ns_cbranch_scc1 {last}")
    stamp(a, 16, 0, 'f')
    store_x(a, ACC, RES, 32, 24, 25, 5)
    publish(a)
    stamp(a, 11); stamp(a, 17, 0, 'f')
    a(f"s_barrier\n{skip}:\ns_cmp_lg_u32 s{S_L}, 0\ns_cbranch_scc1 {wb}")
    a(f"s_mov_b32 s{S_L}, 1\ns_add_u32 s{S_LB}, s{S_LB}, {LSTR}\ns_branch {pro1_label}")
    a(f"{last}:\ns_mul_i32 s24, s45, {32*896}\ns_lshl_b32 s25, s46, 6\ns_add_u32 s24, s24, s25")
    store_out(a, RES, 24, 5)
    a(f"s_branch {end}\n{wb}:")
    if 'W' in OPT:
        a(f"s_cmp_lg_u32 s{S_W}, 0\ns_cbranch_scc1 {end}\ns_sub_u32 s{S_TAG}, s{S_TAG}, 1\ns_mov_b64 s[{S_MASK}:{S_MASK+1}], -1")
        await_(a)
        a("buffer_wbl2 sc1\ns_waitcnt vmcnt(0)")
    a(f"s_branch {end}")
```

```python
from p_common import *
from p_prep import kv_core, XK
Q, S, P, O, KVR, RES = 16, 48, 80, 96, 160, 224
WO = 256 + 128
CU = -1 if 'C' in OPT else 50
NT = ' nt' if 'N' in OPT else ''
def kv_ld(a, b, isv):
    if isv == 0: a(f"s_mov_b32 s26, {b*4096}")
    else: a(f"s_mov_b32 s27, {b*4096}")
    for i in range(2):
        a.v(f"buffer_load_dwordx4 {R(KVR+16*(b&3)+8*isv+4*i,4)}, v0, {srd(SRD_KV)}, s{26+isv} offen offset:{(2*isv+i)*KB}", ('kv', b, isv))
def kv_srd(a):
    a(f"s_lshl_b32 s24, s{S_W}, 16\ns_add_u32 s24, s24, s{S_LB}\ns_add_u32 s24, s24, {KVO}\ns_add_u32 s{SRD_KV}, s{WS}, s24\ns_addc_u32 s{SRD_KV+1}, s{WS+1}, 0")
    a(f"s_mov_b32 s{SRD_KV+2}, 65536\ns_mov_b32 s{SRD_KV+3}, 0x20000")
def kv_first(a):
    for b in range(4):
        kv_ld(a, b, 0)
        if b < 3: kv_ld(a, b, 1)
def qk(a, h, slot, sb, half):
    a(f"{MF} {vr(S+16*sb,16)}, {R(KVR+16*slot+4*half,4)}, {vr(Q+8*h+4*half,4)}, {vr(S+16*sb,16) if half else 0}")
def pv(a, h, slot, pb, half, first=False):
    a(f"{MF} {R(O+16*h,16)}, {R(KVR+16*slot+8+4*half,4)}, {vr(P+8*pb+4*half,4)}, {0 if first and not half else R(O+16*h,16)}")
def dma7(a, t, slot, tag):
    def f(i):
        def g():
            if i % 4 == 0: a(f"s_add_u32 m0, s45, {slot + i*KB}\ns_add_u32 s46, s44, {t*28*KB + i*KB}")
            a.v(f"buffer_load_dwordx4 v0, {srd(WS)}, s46 offen offset:{(i%4)*KB}{NT} lds", tag)
        return g
    return [f(i) for i in range(7)]
def wd(a, k, fi):
    def g():
        if k % 4 == 0: a("s_add_u32 s53, s52, s55" if fi else f"s_add_u32 s52, s54, {k*KB}")
        ld1(a, 256 + 8*k + 4*fi, 52+fi, (k % 4)*KB, 'wd', 0, NT)
    return g
def att_prefetch(a):
    a(f"s_mul_i32 s45, s{S_W}, {7*KB}\ns_mul_i32 s44, s{S_JJ}, {7*28*KB}\ns_add_u32 s44, s44, s45\ns_add_u32 s44, s44, {WGU}")
    a(f"s_lshl_b32 s47, s{S_Q}, 2\ns_add_u32 s47, s47, s{S_W}\ns_min_u32 s47, s47, 13\ns_lshl_b32 s48, s47, 15\ns_add_u32 s48, s48, {WOF}")
    a(f"s_mul_i32 s50, s{S_TB}, {28*KB}\ns_lshl_b32 s51, s47, 11\ns_add_u32 s50, s50, s51\ns_add_u32 s50, s50, {XA}")
    a(f"s_mul_i32 s51, s{S_JJ}, {7*128}\ns_add_u32 s51, s51, {CS+16*128}")
    def wo(i):
        def g():
            if i % 4 == 0: a(f"s_add_u32 s49, s48, {i*KB}")
            ld1(a, WO+4*i, 49, (i % 4)*KB, 'wo')
        return g
    def cs():
        a(f"s_mov_b32 m0, {L_CS}\ns_nop 0"); a.v(f"buffer_load_dwordx4 v0, {srd(WS)}, s51 offen lds", 'cs')
    pf = [wo(i) for i in range(32)] + [lambda i=i: ld1(a, RES+4*i, 50, i*KB, 'res', 0, SL) for i in range(2)] + [cs]
    a(f"s_mul_i32 s54, s{S_DFP}, {224*KB}\ns_mul_i32 s52, s{S_W}, {28*KB}\ns_add_u32 s54, s54, s52\ns_add_u32 s54, s54, {WDF}")
    a(f"s_bitcmp1_b32 s{S_W}, 0\ns_cselect_b32 s52, {112*KB}, 0\ns_lshl_b32 s55, s52, 1\ns_sub_u32 s55, {112*KB}, s55\ns_add_u32 s54, s54, s52")
    pf += [wd(a, k, fi) for k in range(16) for fi in range(2)]
    for t in range(3): pf += dma7(a, t, L_GU + t*28*KB, ('T', t))
    a(f"s_add_u32 s24, s{S_GTB}, s{S_W}\ns_lshl_b32 s24, s24, 4\ns_add_u32 s24, s24, s{S_JJ}\ns_mul_i32 s24, s24, {7*KB}\ns_add_u32 s24, s24, {HO}")
    a(f"s_add_u32 s16, s{WS}, s24\ns_addc_u32 s17, s{WS+1}, 0")
    return pf
def main_loop(a, pf):
    a.wait(('kv', 0, 0))
    qk(a, 0, 0, 0, 0); qk(a, 0, 0, 0, 1)
    a("s_nop 10")
    pf = list(pf)
    for u in range(64):
        kb, h = u >> 2, u & 3
        sr_, pb = S + 16*(u & 1), P + 8*(u & 1)
        for q in range(4):
            if q == 0 and h == 3 and kb < 15: a.wait(('kv', kb+1, 0))
            if q == 2 and h == 1: a.wait(('kv', kb, 1))
            if q < 2:
                if u < 63: qk(a, (u+1) & 3, ((u+1) >> 2) & 3, (u+1) & 1, q)
            elif u: pv(a, (u-1) & 3, ((u-1) >> 2) & 3, (u-1) & 1, q-2, u <= 4)
            n0 = len(a.lines)
            if q == 1 and h == 3 and kb + 4 < 16: kv_ld(a, kb+4, 0)
            if q == 2 and h == 1 and kb + 3 < 16: kv_ld(a, kb+3, 1)
            if (q == 3 or (q == 0 and u % 2 == 0)) and pf: pf.pop(0)()
            if u == CU and q == 2:
                a(f"s_getpc_b64 s[24:25]\nLpc2:\ns_and_b32 s30, s{S_TB}, 7\ns_lshl_b32 s30, s30, 2\ns_add_u32 s30, s30, s{S_Q}\ns_lshl_b32 s30, s30, 2\ns_add_u32 s30, s30, s{S_W}\ns_lshl_b32 s30, s30, 10")
                a(f"v_add_u32 v8, s30, v0\nv_min_u32 v8, Lcode_end-Lpc2-16, v8\nv_mov_b32 v9, s25\nv_add_co_u32 v8, vcc, s24, v8\nv_addc_co_u32 v9, vcc, 0, v9, vcc")
                a.v("global_load_dwordx4 v[244:247], v[8:9], off")
            if u < 56 and q == (2 if h == 3 else 1): a(f"s_load_dwordx2 s[18:19], s[16:17], {128*u+60}")
            for e in range(4): a(f"v_exp_f32 v{sr_+4*q+e}, v{sr_+4*q+e}")
            cv = [] if q == 0 else [2*(q-1), 2*(q-1)+1] + ([6, 7] if q == 3 else [])
            for c in cv: a(f"v_cvt_pk_bf16_f32 v{pb+c}, v{sr_+2*c}, v{sr_+2*c+1}")
    assert not pf
    a("s_nop 0")
    pv(a, 3, 3, 1, 0); pv(a, 3, 3, 1, 1)
def rot(a, i, shift, mul, v, base=0):
    a(f"s_add_u32 s30, s{S_W}, {i}\ns_and_b32 s30, s30, 3\ns_mul_i32 s30, s30, {mul}\nv_add_u32 v{v}, s30, v{base}")
def max_pass(a):
    for h in range(4): a(f"v_mov_b32 v{P+h}, 0xff800000")
    a("s_mov_b32 s26, 0\ns_mov_b32 s28, 16")
    L = a.label('Lmax')
    a(f"{L}:")
    for i in range(2): a(f"buffer_load_dwordx4 {R(KVR+4*i,4)}, v0, {srd(SRD_KV)}, s26 offen offset:{i*KB}")
    a("s_add_u32 s26, s26, 4096\ns_waitcnt vmcnt(0)")
    for h in range(4):
        qk(a, h, 0, 0, 0); qk(a, h, 0, 0, 1); a("s_nop 12")
        for r in range(8): a(f"v_max3_f32 v{P+h}, v{S+2*r}, v{S+2*r+1}, v{P+h}")
    a(f"s_sub_u32 s28, s28, 1\ns_cmp_lg_u32 s28, 0\ns_cbranch_scc1 {L}")
    a(f"s_lshl_b32 s24, s{S_W}, 8\nv_add_u32 v6, s24, v13\nv_lshlrev_b32 v7, 2, v1")
    for h in range(4): rot(a, h, 0, KB, 5, 6); a(f"ds_write_b32 v5, v{P+h} offset:{L_Q}")
    a("s_waitcnt lgkmcnt(0)\ns_barrier")
    for h in range(4):
        rot(a, h, 0, KB, 5, 7)
        for i in range(8): a(f"ds_read_b32 v{S+i}, v5 offset:{L_Q+128*i}")
        a("s_waitcnt lgkmcnt(0)")
        for i in (1, 3, 5): a(f"v_max3_f32 v{S}, v{S+i}, v{S+i+1}, v{S}")
        a(f"v_max_f32 v{S}, v{S}, v{S+7}\nv_sub_f32 v8, 0, v{S}")
        a("v_and_b32 v9, 0xffff0000, v8\nv_sub_f32 v8, v8, v9\nv_and_b32 v10, 0xffff0000, v8\nv_sub_f32 v8, v8, v10")
        a(f"v_lshrrev_b32 v9, 16, v9\ns_mov_b32 exec_lo, 0\nv_or_b32 v{Q+8*h+6}, v9, v10\nv_lshrrev_b32 v{Q+8*h+7}, 16, v8\ns_mov_b32 exec_lo, -1")
    a("s_barrier")
def finish(a, retry):
    for i in range(1, 4): rot(a, i, 0, 12*KB, 4+i)
    rot(a, 0, 0, 12*KB, 8)
    for i in range(1, 4):
        if i == 3: a("s_nop 7")
        for q in range(4): a(f"ds_write_b128 v{4+i}, {R(O+16*i+4*q,4)} offset:{(4*(i-1)+q)*KB}")
    a("s_waitcnt lgkmcnt(0)\ns_barrier")
    for j in range(12): a(f"ds_read_b128 {vr(O+16+4*j,4)}, v8 offset:{j*KB}")
    a(f"s_mul_i32 s24, s{S_TB}, {OSTR}\ns_lshl_b32 s25, s{S_Q}, 13\ns_add_u32 s24, s24, s25\ns_lshl_b32 s25, s{S_W}, 11\ns_add_u32 s24, s24, s25")
    a(f"s_add_u32 s24, s24, {OO}")
    for w in range(1, 4):
        a(f"s_waitcnt lgkmcnt({12-4*w})")
        for r in [12] + list(range(12)) + [13, 14, 15]: a(f"v_add_f32 v{O+r}, v{O+r}, v{O+16*w+r}")
        if w == 3: a(f"v_mov_b32 v6, v{O+12}\nv_mov_b32 v5, v{O+12}\nv_mov_b32 v8, 0\nv_mov_b32 v9, 0x21800000")
    a("v_permlane32_swap_b32 v6, v5\nv_mov_b32 v10, 0x5d800000\ns_nop 0\nv_rcp_f32 v7, v5")
    a(f"v_cmp_nge_f32 vcc, v5, v9\nv_cmp_nle_f32 s[30:31], v5, v10")
    for r in range(16): a(f"v_mul_f32 v{O+r}, v{O+r}, v7\nv_fmac_f32 v8, 0, v{O+r}")
    a(f"s_or_b64 s[30:31], s[30:31], vcc\nv_cmp_u_f32 vcc, v8, v8")
    for i in range(8): a(f"v_cvt_pk_bf16_f32 v{P+i}, v{O+2*i}, v{O+2*i+1}")
    a(f"s_or_b64 s[30:31], s[30:31], vcc\ns_mov_b32 exec_lo, 0\nv_mov_b32 v{P+6}, 0\nv_mov_b32 v{P+7}, 0\ns_mov_b32 exec_lo, -1")
    st1(a, P, 24, 0); st1(a, P+4, 24, KB)
    a(f"s_cmp_lg_u64 s[30:31], 0\ns_cselect_b32 s30, 1, 0\ns_andn2_b32 s30, s30, s29\nv_mov_b32 v7, s30\ns_lshl_b32 s30, s{S_W}, 2\ns_add_u32 s30, s30, {L_MISC}\nv_mov_b32 v8, s30")
    a(f"ds_write_b32 v8, v7\ns_waitcnt lgkmcnt(0)\ns_barrier\nv_mov_b32 v8, {L_MISC}\nds_read_b128 v[8:11], v8")
    a(f"s_waitcnt lgkmcnt(0)\nv_or3_b32 v8, v8, v9, v10\nv_or_b32 v8, v8, v11\ns_nop 0\nv_readfirstlane_b32 s30, v8\ns_nop 3\ns_cmp_lg_u32 s30, 0\ns_cbranch_scc1 {retry}")
def x_loads(a):
    a(f"s_mul_i32 s25, s{S_W}, {7*KB}\ns_mul_i32 s24, s{S_TB}, {28*KB}\ns_add_u32 s24, s24, s25\ns_add_u32 s24, s24, {XA}")
    dman(a, 7, 24, 25, 'x', SL)
    a(f"s_mul_i32 s24, s{S_TB}, {14*256}\ns_add_u32 s24, s24, {SA}")
    ld_stats(a, 100, 24, 8, 'stat')
W0 = 10
def wq_loads(a):
    a(f"s_lshl_b32 s25, s{S_Q}, 2\ns_add_u32 s25, s25, s{S_W}\ns_lshl_b32 s28, s25, 7\ns_add_u32 s28, s28, {CS}")
    a(f"s_mul_i32 s29, s25, {28*KB}\ns_add_u32 s29, s29, {WQF}")
    ldn(a, 256, W0, 29, lambda i: ('wq', i))
def q_proj(a, extra=(), before_barrier=None):
    B = 224
    extra = [lambda i=i: ldn(a, 256, 1, 29, lambda j: ('wq', j), '', i) for i in range(W0, 28)] + [lambda: ld_cs(a, 116, 28, 9, 'qcs')] + list(extra)
    for i in range(8): a(f"ds_read_b128 {vr(B+4*i,4)}, v0 offset:{i*KB}")
    a(f"v_mul_f32 v7, {fhex(QSCALE)}, v7")
    for i in range(28):
        a.wait(('wq', i), f" lgkmcnt({min(7, 27-i)})")
        a(f"{MF} {vr(S,16)}, {R(256+4*i,4)}, {vr(B+4*(i%8),4)}, {vr(S,16) if i else 0}")
        if i + 8 < 28: a(f"ds_read_b128 {vr(B+4*(i%8),4)}, v0 offset:{(i+8)*KB}")
        if extra: extra.pop(0)()
    while extra: extra.pop(0)()
    stamp(a, 12, 0, 'p')
    rot(a, 0, 0, 2*KB, 5)
    for i in range(1, 4): rot(a, i, 0, 2*KB, 132+i)
    a.wait('qcs')
    for r in range(16): a(f"v_fma_f32 v{S+r}, -v6, v{116+r}, v{S+r}\nv_mul_f32 v{S+r}, v7, v{S+r}")
    for i in range(8): a(f"v_cvt_pk_bf16_f32 v{P+i}, v{S+2*i}, v{S+2*i+1}")
    a(f"s_mov_b32 exec_lo, 0\nv_mov_b32 v{P+6}, 0\nv_mov_b32 v{P+7}, 0\ns_mov_b32 exec_lo, -1")
    a(f"ds_write_b128 v5, {vr(P,4)} offset:{L_Q}\nds_write_b128 v5, {vr(P+4,4)} offset:{L_Q+KB}")
    if before_barrier: before_barrier()
    a("s_waitcnt lgkmcnt(0)\ns_barrier")
    for i in range(4):
        for j in range(2): a(f"ds_read_b128 {vr(Q+8*i+4*j,4)}, v{132+i if i else 5} offset:{L_Q+j*KB}")
def pro0(a):
    x_loads(a); wq_loads(a); kv_srd(a)
    a.wait('stat'); stamp(a, 11, None, 'p'); a("s_barrier")
    fin_stats(a, 100, 6, 7, 8)
    q_proj(a, [lambda b=b, v=v: kv_ld(a, b, v) for b in range(4) for v in range(2) if 2*b+v < 7])
    a("s_waitcnt lgkmcnt(0)")
def pro1(a):
    a(f"s_lshr_b32 s24, s{S_JJ}, 3\ns_mul_i32 s24, s24, 28\ns_bfe_u32 s25, s{S_JJ}, 0x10002\ns_lshl_b32 s25, s25, 1\ns_add_u32 s24, s24, s25")
    a(f"s_mov_b32 s{S_MASK}, 0x3333333\ns_mov_b32 s{S_MASK+1}, 0\ns_lshl_b64 s[{S_MASK}:{S_MASK+1}], s[{S_MASK}:{S_MASK+1}], s24")
    await_(a); next_tag(a)
    stamp(a, 12)
    x_loads(a); kv_srd(a)
    nokv, kv, qp = a.label('Lnokv'), a.label('Lkv'), a.label('Lqp')
    a(f"s_cmp_eq_u32 s{S_Q}, 0\ns_cbranch_scc1 {kv}")
    vm = list(a.vm)
    wq_loads(a); a.wait('stat'); fin_stats(a, 100, 6, 7, 8)
    vq = list(a.vm)
    a(f"s_barrier\ns_branch {qp}\n{kv}:")
    a.vm = vm
    a.wait('stat'); fin_stats(a, 100, 6, 7, 8)
    a(f"s_mul_i32 s24, s{S_W}, {7*KB}\nv_add_u32 v8, s24, v0")
    for i in range(7): a(f"ds_read_b128 {vr(XK+4*i,4)}, v8 offset:{i*KB}")
    a(f"s_lshl_b32 s48, s{S_TB}, 12\ns_lshl_b32 s24, s{S_W}, 10\ns_add_u32 s48, s48, s24\ns_add_u32 s48, s48, s{S_LB}\ns_add_u32 s48, s48, {KVO}\ns_waitcnt lgkmcnt(0)")
    kv_core(a, lambda i: 256+224+4*i if i < 8 else 232+4*(i-8), 48)
    a(f"s_waitcnt vmcnt(0)\ns_barrier\ns_cmp_lg_u32 s{S_W}, 0\ns_cbranch_scc1 {nokv}\ns_lshl_b32 s24, s{S_TB}, 6\ns_add_u32 s24, s24, {GF2}")
    publish_global(a, 24, 0x40)
    stamp(a, 13)
    a(f"{nokv}:")
    wq_loads(a)
    a(f"{qp}:")
    a.vm = vq
    def poll():
        sk = a.label('Lnp')
        a(f"s_cmp_lg_u32 s{S_W}, 0\ns_cbranch_scc1 {sk}")
        poll_global(a, GF2, 1, 0x40)
        a(f"{sk}:")
    q_proj(a, (), poll)
    kv_first(a)
    a("s_waitcnt lgkmcnt(0)")
    stamp(a, 14)
def oproj(a):
    a(f"s_lshr_b32 s24, s{S_JJ}, 2\ns_lshl_b32 s24, s24, 4\ns_mov_b32 s{S_MASK}, 0xffff\ns_mov_b32 s{S_MASK+1}, 0\ns_lshl_b64 s[{S_MASK}:{S_MASK+1}], s[{S_MASK}:{S_MASK+1}], s24")
    a(f"s_lshl_b32 s25, s{S_W}, 13\ns_mul_i32 s24, s{S_TB}, {OSTR}\ns_add_u32 s24, s24, s25\ns_add_u32 s24, s24, {OO}")
    await_(a); next_tag(a)
    stamp(a, 6, 0)
    dman(a, 8, 24, 25, 'o', SL)
    a(f"s_mul_i32 s24, s{S_TB}, {14*256}\ns_lshl_b32 s25, s47, 8\ns_add_u32 s25, s25, s24\ns_add_u32 s25, s25, {SB}\ns_add_u32 s24, s50, {XB-XA}")
    init_resid(a, 16, RES)
    a.wait0(); a("s_barrier")
    idle, join = a.label('Lidle'), a.label('Ljoin')
    a(f"s_lshl_b32 s30, s{S_Q}, 2\ns_add_u32 s30, s30, s{S_W}\ns_cmp_ge_u32 s30, 14\ns_cbranch_scc1 {idle}")
    B, A = 48, 16
    for i in range(8): a(f"ds_read_b128 {vr(B+4*i,4)}, v0 offset:{i*KB}")
    for i in range(32):
        a(f"s_waitcnt lgkmcnt({min(7, 31-i)})")
        a(f"{MF} {vr(A,16)}, {R(WO+4*i,4)}, {vr(B+4*(i%8),4)}, {vr(A,16)}")
        if i + 8 < 32: a(f"ds_read_b128 {vr(B+4*(i%8),4)}, v0 offset:{(i+8)*KB}")
    a("s_barrier\ns_nop 10")
    pack(a, A, RES)
    store_x(a, A, RES, 32, 24, 25, 5)
    publish(a)
    a(f"s_branch {join}\n{idle}:\ns_barrier\n{join}:")
    stamp(a, 7, 0)
```

```python
from asmlib import *
import struct
KB = 1024
WQF = 0
WKF = WQF + 16*28*KB
WOF = WKF + 56*KB
WGU = WOF + 14*32*KB
WDF = WGU + 112*28*KB
CS  = WDF + 14*112*KB
ACT = CS + 17*KB
XA = XB = ACT; SA = SB = XA + 64*28*KB
HO = OO = SB + 64*14*256; OSTR = 112*KB
KVO = HO + 64*112*KB; LSTR = 64*4*KB
GF1 = KVO + 2*LSTR; GF2 = GF1 + 16*KB; FL = GF2 + 4*KB; EPOCH = FL + 8*KB
WS_END = EPOCH + KB
XF = [XA, XB, XA, XB]; KVF = [KVO, LSTR+KVO]; OF = [OO, OO]; HF = [HO, HO]
MF = "v_mfma_f32_32x32x16_bf16"
OOB = 0x40000000
LOG2E = 1.4426950408889634
QSCALE = (28 ** -0.5) * LOG2E
def fhex(x): return hex(struct.unpack('<I', struct.pack('<f', x))[0])
S_W, S_TB, S_Q, S_JJ, S_LB = 3, 4, 5, 6, 7
WS, SRD_A, SRD_B, SRD_KV = 8, 12, 16, 20
S_B, S_MODE, S_FB, S_FO, S_TAG, S_L, S_GTB, S_SPIN, S_DTP, S_DFP, S_MASK, S_G = 32, 33, 34, 35, 36, 37, 38, 39, 40, 41, 42, 44
import os
OPT = os.environ.get('OPT', '')
SC = ' sc1'
SO = ' sc1' if 'O' in OPT else ''
SL = '' if 'n' in OPT else ' sc1'
L_Q, L_GU, L_CS, L_W, L_KVR, L_TR, L_MISC, LDS_SIZE = 48*KB, 56*KB, 140*KB, 56*KB, 112*KB, 144*KB, 148*KB, 152*KB

class A2(Asm):
    def __init__(self):
        super().__init__(); self.vm = []
    def v(self, s, tag=None):
        self(s); self.vm.append(tag)
    def n_after(self, tag):
        idx = max(i for i, t in enumerate(self.vm) if t == tag)
        return len(self.vm) - 1 - idx
    def wait(self, tag, extra=''):
        n = self.n_after(tag)
        self(f"s_waitcnt vmcnt({min(n, 63)}){extra}")
    def wait0(self):
        self("s_waitcnt vmcnt(0)"); self.vm = []
def srd(b): return f"s[{b}:{b+3}]"
def ld1(a, dst, soff, imm, tag, voff=0, fl='', s=WS):
    a.v(f"buffer_load_dwordx4 {R(dst,4)}, v{voff}, {srd(s)}, s{soff} offen offset:{imm}{fl}", tag)
def ldn(a, dst, n, soff, tag, fl='', i0=0):
    for i in range(i0, i0+n):
        if i and i % 4 == 0: a(f"s_add_u32 s{soff}, s{soff}, 4096")
        ld1(a, dst + 4*i, soff, (i % 4)*KB, tag(i) if callable(tag) else tag, 0, fl)
def dman(a, n, soff, sm0, tag, fl='', i0=0):
    for i in range(i0, i0+n):
        if i % 4 == 0:
            if i: a(f"s_add_u32 s{soff}, s{soff}, 4096\ns_add_u32 s{sm0}, s{sm0}, 4096")
            a(f"s_mov_b32 m0, s{sm0}\ns_nop 0")
        a.v(f"buffer_load_dwordx4 v0, {srd(WS)}, s{soff} offen offset:{(i%4)*KB}{fl} lds", tag)
def st1(a, src, soff, imm, tag='st', voff=0, fl=''):
    a.v(f"buffer_store_dwordx4 {R(src,4)}, v{voff}, {srd(WS)}, s{soff} offen offset:{imm}{fl}", tag)
def ld_stats(a, dst, soff, vtmp, tag, fl=SL):
    a(f"v_mul_u32_u24 v{vtmp}, {7*256}, v2\nv_lshl_add_u32 v{vtmp}, v1, 3, v{vtmp}")
    for i in range(7):
        a.v(f"buffer_load_dwordx2 {vr(dst+2*i,2)}, v{vtmp}, {srd(WS)}, s{soff} offen offset:{i*256}{fl}", tag)
def stats_tail(mu, rs):
    return [f"v_mul_f32 v{mu}, {fhex(1/448)}, v{mu}", f"v_mul_f32 v{rs}, {fhex(1/448)}, v{rs}",
            f"v_fma_f32 v{rs}, -v{mu}, v{mu}, v{rs}", f"v_max_f32 v{rs}, 0, v{rs}", f"v_add_f32 v{rs}, {fhex(1e-5)}, v{rs}",
            f"v_rsq_f32 v{rs}, v{rs}", "s_nop 0"]
def fin_stats_list(src, mu, rs, t):
    o = []
    for i in (1, 3, 5): o += [f"v_add_f32 v{src+2*i}, v{src+2*i}, v{src+2*i+2}", f"v_add_f32 v{src+2*i+1}, v{src+2*i+1}, v{src+2*i+3}"]
    o += [f"v_add_f32 v{src}, v{src}, v{src+2}", f"v_add_f32 v{src+1}, v{src+1}, v{src+3}",
          f"v_add_f32 v{src+6}, v{src+6}, v{src+10}", f"v_add_f32 v{src+7}, v{src+7}, v{src+11}",
          f"v_add_f32 v{mu}, v{src}, v{src+6}", f"v_add_f32 v{rs}, v{src+1}, v{src+7}",
          f"v_mov_b32 v{t}, v{mu}", f"v_mov_b32 v{t+1}, v{rs}", "s_nop 1",
          f"v_permlane32_swap_b32 v{t}, v{mu}", f"v_permlane32_swap_b32 v{t+1}, v{rs}", "s_nop 1",
          f"v_add_f32 v{mu}, v{mu}, v{t}", f"v_add_f32 v{rs}, v{rs}, v{t+1}"]
    return o + stats_tail(mu, rs)
def fin_stats(a, src, mu, rs, t):
    for i in fin_stats_list(src, mu, rs, t): a(i)
def ld_cs(a, dst, soff, vtmp, tag):
    a(f"v_lshlrev_b32 v{vtmp}, 4, v2")
    for q in range(4): ld1(a, dst+4*q, soff, 32*q, tag, vtmp)
def init_resid(a, acc, res):
    for i in range(8): a(f"v_lshlrev_b32 v{acc+2*i}, 16, v{res+i}\nv_and_b32 v{acc+2*i+1}, 0xffff0000, v{res+i}")
def pack(a, acc, res):
    for i in range(8): a(f"v_cvt_pk_bf16_f32 v{res+i}, v{acc+2*i}, v{acc+2*i+1}")
def store_x(a, acc, res, t, s_x, s_st, vtmp):
    st1(a, res, s_x, 0); st1(a, res+4, s_x, KB)
    a(f"v_add_f32 v{t}, v{acc}, v{acc+1}\nv_mul_f32 v{t+1}, v{acc}, v{acc}\nv_add_f32 v{t+2}, v{acc+2}, v{acc+3}\nv_mul_f32 v{t+3}, v{acc+1}, v{acc+1}")
    a(f"v_fmac_f32 v{t+1}, v{acc+2}, v{acc+2}\nv_fmac_f32 v{t+3}, v{acc+3}, v{acc+3}")
    for i in range(4, 16, 2):
        a(f"v_add_f32 v{t}, v{t}, v{acc+i}\nv_fmac_f32 v{t+1}, v{acc+i}, v{acc+i}\nv_add_f32 v{t+2}, v{t+2}, v{acc+i+1}\nv_fmac_f32 v{t+3}, v{acc+i+1}, v{acc+i+1}")
    a(f"v_add_f32 v{t}, v{t}, v{t+2}\nv_add_f32 v{t+1}, v{t+1}, v{t+3}\nv_lshlrev_b32 v{vtmp}, 3, v1")
    a(f"v_mov_b32 v{t+2}, v{t}\nv_mov_b32 v{t+3}, v{t+1}\ns_nop 1")
    a(f"v_permlane32_swap_b32 v{t+2}, v{t}\nv_permlane32_swap_b32 v{t+3}, v{t+1}\ns_nop 1")
    a(f"v_add_f32 v{t}, v{t}, v{t+2}\nv_add_f32 v{t+1}, v{t+1}, v{t+3}\ns_mov_b32 exec_hi, 0")
    a.v(f"buffer_store_dwordx2 {vr(t,2)}, v{vtmp}, {srd(WS)}, s{s_st} offen", 'st')
    a("s_mov_b32 exec_hi, -1")
def store_out(a, res, s_out, vtmp):
    a(f"v_mul_u32_u24 v{vtmp}, 896, v1\nv_lshl_add_u32 v{vtmp}, v2, 4, v{vtmp}")
    a(f"v_permlane32_swap_b32 v{res}, v{res+2}\nv_permlane32_swap_b32 v{res+1}, v{res+3}")
    a(f"v_permlane32_swap_b32 v{res+4}, v{res+6}\nv_permlane32_swap_b32 v{res+5}, v{res+7}")
    a.v(f"buffer_store_dwordx4 {vr(res,4)}, v{vtmp}, {srd(SRD_A)}, s{s_out} offen{SO}")
    a.v(f"buffer_store_dwordx4 {vr(res+4,4)}, v{vtmp}, {srd(SRD_A)}, s{s_out} offen offset:32{SO}")

def publish(a, tag='st'):
    slow, done = a.label('Lps'), a.label('Lpd')
    if tag: a.wait(tag)
    a(f"v_mov_b32 v14, s{S_TAG}\nv_mov_b32 v15, 0\ns_cmp_lg_u32 s{S_MODE}, 0\ns_cbranch_scc1 {slow}\ns_mov_b64 exec, 1")
    a.v(f"buffer_store_dword v14, v15, {srd(WS)}, s{S_FO} offen", 'flag')
    a(f"s_branch {done}\n{slow}:\ns_waitcnt vmcnt(0)\nbuffer_wbl2 sc1\ns_waitcnt vmcnt(0)\ns_mov_b64 exec, 1")
    a(f"buffer_store_dword v14, v15, {srd(WS)}, s{S_FO} offen sc1\n{done}:\ns_mov_b64 exec, -1")
SPIN_MAX = 1 << 20
def await_(a):
    L, X, F = a.label('Lw'), a.label('Lwx'), a.label('Lwf')
    a(f"s_mov_b64 exec, s[{S_MASK}:{S_MASK+1}]\n{L}:\ns_add_u32 s{S_SPIN}, s{S_SPIN}, 1\ns_cmp_gt_u32 s{S_SPIN}, {SPIN_MAX}\ns_cbranch_scc1 {X}")
    a(f"buffer_load_dword v14, v13, {srd(WS)}, s{S_FB} offen sc1\ns_waitcnt vmcnt(0)")
    a(f"v_subrev_u32 v14, s{S_TAG}, v14\nv_cmp_lt_u32 vcc, 15, v14\ns_cbranch_vccnz {L}")
    a(f"{X}:\ns_mov_b64 exec, -1\ns_cmp_eq_u32 s{S_MODE}, 0\ns_cbranch_scc1 {F}\nbuffer_inv sc1\ns_waitcnt vmcnt(0)\n{F}:")
    a.vm = []
def next_tag(a): a(f"s_add_u32 s{S_TAG}, s{S_TAG}, 1")
def poll_global(a, base, nreg, tagoff, keep=None):
    L, X = a.label('Lg'), a.label('Lgx')
    a(f"v_lshlrev_b32 v12, 2, v0\ns_add_u32 s30, s{S_B}, {tagoff}")
    a(f"{L}:\ns_add_u32 s{S_SPIN}, s{S_SPIN}, 1\ns_cmp_gt_u32 s{S_SPIN}, {SPIN_MAX}\ns_cbranch_scc1 {X}\ns_mov_b32 s31, {base}")
    for i in range(nreg):
        if i: a("s_add_u32 s31, s31, 4096")
        a(f"buffer_load_dword v{8+i}, v12, {srd(WS)}, s31 offen sc1")
    a("s_waitcnt vmcnt(0)")
    for i in range(nreg): a(f"v_subrev_u32 v{8+i}, s30, v{8+i}")
    if nreg == 4: a("v_max3_u32 v14, v8, v9, v10\nv_max_u32 v14, v14, v11")
    a(f"v_cmp_lt_u32 vcc, 15, v{14 if nreg == 4 else 8}\ns_cbranch_vccnz {L}\n{X}:")
    a.vm = []
def publish_global(a, soff, tagoff):
    a(f"s_add_u32 s30, s{S_B}, {tagoff}\nv_mov_b32 v14, s30\nv_mov_b32 v15, 0\ns_mov_b64 exec, 1")
    a.v(f"buffer_store_dword v14, v15, {srd(WS)}, s{soff} offen sc1", 'flag')
    a("s_mov_b64 exec, -1")

STAMPS = WS_END
NST = 20
STAMP_ON = [False]
TM = "s_memtime" if "c" in OPT else "s_memrealtime"
def stamp(a, i, l=None, grp='t'):
    if STAMP_ON[0] != grp: return
    if l is None: a(f"{TM} s[{60+2*i}:{61+2*i}]"); return
    sk = a.label('Lst')
    a(f"s_cmp_lg_u32 s{S_L}, {l}\ns_cbranch_scc1 {sk}\n{TM} s[{60+2*i}:{61+2*i}]\n{sk}:")
def stamp_head(a):
    if STAMP_ON[0]:
        for i in range(2*NST): a(f"s_mov_b32 s{60+i}, 0")
        a(f"{TM} s[60:61]\ns_mov_b32 s58, s2")
def stamp_tail(a):
    if not STAMP_ON[0]: return
    a(f"s_waitcnt vmcnt(0) lgkmcnt(0)\n{TM} s[{60+2*NST-2}:{60+2*NST-1}]\ns_waitcnt lgkmcnt(0)\ns_mov_b64 exec, 1")
    if 'd' in OPT:
        a(f"s_lshl_b32 s58, s58, 2\ns_add_u32 s58, s58, s{S_W}\ns_cmp_lg_u32 s58, 0\ns_cbranch_scc1 Lnodbg\ns_load_dwordx2 s[24:25], s[0:1], 80\nv_mov_b32 v1, 0\ns_waitcnt lgkmcnt(0)")
        for n, i in enumerate((1, 2, 3, 4, 5, 7, 8, 9, 10, 11, 12, 14, 15, 16, 17, 19)):
            a(f"s_sub_u32 s58, s{60+2*i}, s60\nv_mov_b32 v2, s58\nglobal_store_dword v1, v2, s[24:25] offset:{4*n}")
        a("Lnodbg:")
        return
    a(f"s_lshl_b32 s58, s58, 2\ns_add_u32 s58, s58, s{S_W}\ns_mul_i32 s58, s58, {NST*4}\ns_add_u32 s58, s58, {STAMPS}\nv_mov_b32 v1, s58")
    for i in range(NST): a(f"v_mov_b32 v2, s{60+2*i}\nglobal_store_dword v1, v2, s[{WS}:{WS+1}] offset:{4*i}")
```

```python
from p_common import *
from p_att import dma7, wd
X = 116
EB = 5 if 'E' not in OPT else 6
LC = 1
HS = 31 if 'H' in OPT else 3
SLOT = [56*KB, 84*KB, 112*KB, 0, 28*KB, 56*KB, 84*KB]
def gu_epi(acc, C, T, MU, RS, NL):
    o = []
    for r in range(16): o.append(f"v_fma_f32 v{acc+r}, -v{MU}, v{C+r}, v{acc+r}")
    B = lambda r: [f"v_mul_f32 v{acc+r}, v{NL}, v{acc+r}"] if r < 8 else []
    o += B(0) + B(1)
    for r in range(12):
        if r < 8: o.append(f"v_exp_f32 v{acc+r}, v{acc+r}")
        o += B(r+2)
        if 1 <= r < 9: o.append(f"v_fma_f32 v{acc+r-1}, v{acc+r-1}, v{RS}, v{RS}")
        if 2 <= r < 10: o.append(f"v_rcp_f32 v{acc+r-2}, v{acc+r-2}")
        if 3 <= r < 11: o.append(f"v_mul_f32 v{acc+8+r-3}, v{acc+r-3}, v{acc+8+r-3}")
        if r >= 5 and r % 2: o.append(f"v_cvt_pk_bf16_f32 v{T+(r-5)//2}, v{acc+8+r-5}, v{acc+8+r-4}")
    return o
def wkv_loads(a):
    sk = a.label('Lnw')
    a(f"s_or_b32 s30, s{S_Q}, s{S_L}\ns_cbranch_scc1 {sk}\ns_mul_i32 s30, s{S_W}, {14*KB}\ns_add_u32 s30, s30, {WKF}")
    for i in range(14):
        if i and i % 4 == 0: a("s_add_u32 s30, s30, 4096")
        a(f"buffer_load_dwordx4 {R(256+224+4*i if i < 8 else 232+4*(i-8), 4)}, v0, {srd(WS)}, s30 offen offset:{(i%4)*KB}")
    a(f"{sk}:")
def gu(a):
    ACC, A, C, T, D, X0 = 16, 256+224, 80, 96, 7, 8
    MU, RS, NL = 6, 7, 9
    a(f"s_lshl_b32 s24, s{S_W}, 4\ns_mov_b32 s{S_MASK}, 0x3fff\ns_mov_b32 s{S_MASK+1}, 0\ns_lshl_b64 s[{S_MASK}:{S_MASK+1}], s[{S_MASK}:{S_MASK+1}], s24")
    a(f"s_add_u32 s27, s{S_GTB}, s{S_W}\ns_mul_i32 s24, s27, {28*KB}\ns_add_u32 s24, s24, {XB}")
    a(f"s_mul_i32 s25, s27, {14*256}\ns_add_u32 s25, s25, {SB}")
    a(f"s_mul_i32 s27, s27, {112*KB}\ns_mul_i32 s26, s{S_JJ}, {7*KB}\ns_add_u32 s27, s27, s26\ns_add_u32 s27, s27, {HO}")
    a(f"v_add_u32 v3, 0x10000, v0\nv_add_u32 v4, 0x20000, v0\nv_lshlrev_b32 v5, 4, v2\nv_add_u32 v5, 0x20000, v5")
    a(f"v_mul_u32_u24 v8, {7*256}, v2\nv_lshl_add_u32 v8, v1, 3, v8")
    seq = [(t, k) for k in range(28) for t in range(2)] + [(t, k) for t in range(2, 7) for k in range(28)]
    N = len(seq)
    ds = []
    def rd(n):
        t, k = seq[n]
        off = SLOT[t] + k*KB
        a(f"ds_read_b128 {R(A+4*(n%8),4)}, v{(0, 3, 4)[off >> 16]} offset:{off % 65536}"); ds.append(n)
    def dswait(tag):
        i = max(j for j, x in enumerate(ds) if x == tag)
        a(f"s_waitcnt lgkmcnt({min(15, len(ds)-1-i)})")
    for n in range(D): rd(n)
    for f in dma7(a, 3, SLOT[3], ('T', 3)): f()
    await_(a); next_tag(a)
    stamp(a, 8, 0); stamp(a, 16, 1); stamp(a, 1, 0, 'f')
    def xl(i): return lambda: ldn(a, X, 1, 24, lambda j: ('x', j), SL, i)
    def sl(i): return lambda: a.v(f"buffer_load_dwordx2 {vr(100+2*i,2)}, v8, {srd(WS)}, s25 offen offset:{i*256}{SL}", 'stat')
    for i in range(X0): xl(i)()
    at = {n: [] for n in range(N)}
    for i in range(X0, 28): at[2*(i-X0)].append(xl(i))
    for i in range(7): at[2*i+1].append(sl(i))
    for i, f in enumerate(dma7(a, 4, SLOT[4], ('T', 4))): at[57+3*i].append(f)
    for i, f in enumerate(dma7(a, 5, SLOT[5], ('T', 5)) + dma7(a, 6, SLOT[6], ('T', 6))): at[78+3*i].append(f)
    for i, f in enumerate([wd(a, k, fi) for k in range(16, 28) for fi in range(2)]): at[120+3*i].append(f)
    def epi(t):
        o = [('cs', t)] if t else []
        e = gu_epi(ACC + 16*(t % 4), C, T, MU, RS, NL)
        return [('csw', t)] + e[:16] + ([('cs', t+1)] if t < 6 else []) + e[16:] + [('st', t)]
    def emit(x):
        if isinstance(x, str): a(x); return 2 if x.startswith(('v_exp', 'v_rcp')) else 1
        if x[0] == 'cs':
            for q in range(4): a(f"ds_read_b128 {vr(C+4*q,4)}, v5 offset:{L_CS - 131072 + x[1]*128 + 32*q}"); ds.append(x)
            return 4
        if x[0] == 'csw': dswait(('cs', x[1])); return 1
        st1(a, T, 27, 0); a("s_add_u32 s27, s27, 1024"); return 2
    def cost(x): return (2 if x.startswith(('v_exp', 'v_rcp')) else 1) if isinstance(x, str) else {'cs': 4, 'csw': 1, 'st': 2}[x[0]]
    todo = []
    for n, (t, k) in enumerate(seq):
        if t == 0: a.wait(('x', k))
        if n % 2 == 0: dswait(min(n+1, N-1))
        acc = ACC + 16*(t % 4)
        a(f"{MF} {vr(acc,16)}, {R(A+4*(n%8),4)}, {R(X+4*k,4)}, {vr(acc,16) if k else 0}")
        if k == 27 and t >= 1: stamp(a, 2+t, 0, 'f')
        if n + D < N: rd(n + D)
        n0 = len(a.lines)
        for f in at[n]:
            if not ('X' in OPT and n > 56): f()
        used = len(a.lines) - n0 + (LC if len(a.lines) > n0 else 0)
        if n == 56: a("s_barrier")
        if n in (100, 132) and 'X' in OPT: a('s_barrier')
        elif n in (100, 132, 158): a.wait(('T', {100: 4, 132: 5, 158: 6}[n])); a("s_barrier")
        if n == 40: emit(('cs', 0))
        if n == 44:
            a.wait('stat'); todo = fin_stats_list(100, MU, RS, 10) + [f"v_mul_f32 v{NL}, {fhex(-LOG2E)}, v{RS}", f"v_rcp_f32 v{RS}, v{RS}"]
        if n == 58: todo += epi(0) + epi(1)
        if k == 3 and t > 2: todo += epi(t-1)
        budget = EB - used - (n % 2 == 1) + (t >= 5 and len(todo) > 2.6*(28-k))
        while todo and budget >= cost(todo[0]): budget -= emit(todo.pop(0))
        if t >= 3 and k == 27: assert not any(x == ('st', t-3) for x in todo), t
    a("s_nop 10")
    print('epilogue items left', len(todo))
    for x in todo: emit(x)
    stamp(a, 2, 0, 'f')
    for x in epi(6)[:-1]: emit(x)
    stamp(a, 18, 0, 'f')
    emit(('st', 6))
    stamp(a, 9, 0, 'f')
    publish(a)
    stamp(a, 9, 0); stamp(a, 10, 0, 'f')
    wkv_loads(a)
def down(a, pro1_label, end):
    RING, DEP, ACC, RES = 96, 17, 16, 80
    skip, last, wb = a.label('Lskip'), a.label('Llast'), a.label('Lwb')
    next_tag(a)
    a(f"s_cmp_ge_u32 s{S_JJ}, 14\ns_cbranch_scc1 {skip}\ns_sub_u32 s{S_TAG}, s{S_TAG}, 1")
    a(f"s_lshl_b32 s24, s{S_W}, 4\ns_lshl_b32 s25, s{S_DTP}, 1\ns_add_u32 s24, s24, s25\ns_mov_b32 s{S_MASK}, 0x3333\ns_mov_b32 s{S_MASK+1}, 0")
    a(f"s_lshl_b64 s[{S_MASK}:{S_MASK+1}], s[{S_MASK}:{S_MASK+1}], s24\ns_add_u32 s44, s{S_GTB}, s25")
    a(f"s_lshr_b32 s45, s{S_W}, 1\ns_add_u32 s45, s45, s44\ns_and_b32 s46, s{S_W}, 1\ns_lshl_b32 s47, s{S_DFP}, 1\ns_add_u32 s46, s46, s47")
    a(f"s_mul_i32 s47, s45, {28*KB}\ns_lshl_b32 s48, s46, 11\ns_add_u32 s47, s47, s48\ns_add_u32 s24, s47, {XB}")
    ldn(a, RES, 2, 24, 'res', SL)
    a(f"s_mul_i32 s24, s44, {112*KB}\ns_mul_i32 s25, s{S_W}, {28*KB}\ns_add_u32 s24, s24, s25\ns_add_u32 s24, s24, {HO}\ns_add_u32 s25, s24, {112*KB}")
    a(f"s_bitcmp1_b32 s{S_W}, 1\ns_cselect_b32 s26, s25, s24\ns_cselect_b32 s25, s24, s25\ns_mov_b32 s24, s26")
    await_(a); next_tag(a)
    stamp(a, 10, 0); stamp(a, 17, 1); stamp(a, 11, 0, 'f')
    def ld(k):
        if k and k % 4 == 0: a("s_add_u32 s24, s24, 4096\ns_add_u32 s25, s25, 4096")
        for ti in range(2): ld1(a, RING + 8*(k % DEP) + 4*ti, 24+ti, (k % 4)*KB, (k, ti), 0, SL)
    nxt = 4
    for k in range(nxt): ld(k)
    init_resid(a, ACC, RES)
    for k in range(28):
        for ti in range(2):
            a.wait((k, ti))
            for fi in range(2):
                acc = ACC + 16*(2*ti+fi)
                a(f"{MF} {vr(acc,16)}, {R(256+8*k+4*fi,4)}, {vr(RING+8*(k%DEP)+4*ti,4)}, {vr(acc,16) if k or acc == ACC else 0}")
        for _ in range(2 if k < 6 else 1):
            if nxt < 28 and nxt - k <= DEP - 1: ld(nxt); nxt += 1
        if k in (0, 9, 18, 27): stamp(a, 12 + k//9, 0, 'f')
        if k == 20:
            for m in range(4): a(f"s_xor_b32 s30, s{S_W}, {m}\ns_mul_i32 s30, s30, {12*KB}\nv_add_u32 v{5+m}, s30, v0")
    a("s_nop 5")
    for m in range(1, 4):
        if m == 3: a("s_nop 3")
        for q in range(4): a(f"ds_write_b128 v{5+m}, {vr(ACC+16*m+4*q,4)} offset:{(4*(m-1)+q)*KB}")
    a("s_waitcnt lgkmcnt(0)\ns_barrier")
    for j in range(12): a(f"ds_read_b128 {vr(ACC+16+4*j,4)}, v5 offset:{j*KB}")
    a(f"s_add_u32 s24, s47, {XA}\ns_mul_i32 s25, s45, {14*256}\ns_lshl_b32 s48, s46, 8\ns_add_u32 s25, s25, s48\ns_add_u32 s25, s25, {SA}")
    for w in range(1, 4):
        a(f"s_waitcnt lgkmcnt({12-4*w})")
        for r in range(16): a(f"v_add_f32 v{ACC+r}, v{ACC+r}, v{ACC+16*w+r}")
    pack(a, ACC, RES)
    a(f"s_cmp_lg_u32 s{S_L}, 0\ns_cbranch_scc1 {last}")
    stamp(a, 16, 0, 'f')
    store_x(a, ACC, RES, 32, 24, 25, 5)
    publish(a)
    stamp(a, 11); stamp(a, 17, 0, 'f')
    a(f"s_barrier\n{skip}:\ns_cmp_lg_u32 s{S_L}, 0\ns_cbranch_scc1 {wb}")
    a(f"s_mov_b32 s{S_L}, 1\ns_add_u32 s{S_LB}, s{S_LB}, {LSTR}\ns_branch {pro1_label}")
    a(f"{last}:\ns_mul_i32 s24, s45, {32*896}\ns_lshl_b32 s25, s46, 6\ns_add_u32 s24, s24, s25")
    store_out(a, RES, 24, 5)
    a(f"s_branch {end}\n{wb}:")
    if 'W' in OPT:
        a(f"s_cmp_lg_u32 s{S_W}, 0\ns_cbranch_scc1 {end}\ns_sub_u32 s{S_TAG}, s{S_TAG}, 1\ns_mov_b64 s[{S_MASK}:{S_MASK+1}], -1")
        await_(a)
        a("buffer_wbl2 sc1\ns_waitcnt vmcnt(0)")
    a(f"s_branch {end}")
```

```python
from p_common import *
def load_srd(a, off, nb, s=SRD_A):
    a(f"s_load_dwordx2 s[{s}:{s+1}], s[0:1], {off}\ns_mov_b32 s{s+2}, {nb}\ns_mov_b32 s{s+3}, 0x20000")
def xhalf(a, v, t):
    a(f"v_mov_b32 v{t}, v{v}\ns_nop 1\nv_permlane32_swap_b32 v{t}, v{v}\ns_nop 1\nv_add_f32 v{v}, v{v}, v{t}")
def tr_addr(a, v, rowb, sbase):
    a(f"v_bfe_u32 v8, v1, 2, 2\nv_lshl_add_u32 v8, v2, 2, v8\nv_mul_u32_u24 v{v}, {rowb}, v8\nv_lshrrev_b32 v8, 4, v1\nv_lshl_add_u32 v{v}, v8, 5, v{v}")
    a(f"v_and_b32 v8, 3, v1\nv_lshl_add_u32 v{v}, v8, 3, v{v}\nv_add_u32 v{v}, s{sbase}, v{v}")
PK = 16
def unit(a, rowb, offs, dsts, v_dst, cs=None, zero_odd=False):
    n = len(offs)
    a(f"v_lshrrev_b32 v4, 6, v0\nv_mul_u32_u24 v4, {rowb}, v4\nv_and_b32 v8, 48, v0\nv_add_u32 v4, v4, v8\ns_lshl_b32 s47, s{S_W}, 14\ns_waitcnt lgkmcnt(0)")
    for i in range(n):
        a(f"s_add_u32 s46, s44, {offs[i]}\ns_add_u32 m0, s47, {i*KB}\ns_nop 0")
        a.v(f"buffer_load_dwordx4 v4, {srd(SRD_A)}, s46 offen lds", i)
    tr_addr(a, 9, 64, 47)
    if cs: a("v_mov_b32 v10, 0\nv_mov_b32 v11, 0\nv_mov_b32 v12, 0x3f803f80")
    for i in range(n + 1):
        if i < n:
            a.wait(i)
            if i in (0, n-1): stamp(a, 2 + (i > 0), None, 'p')
            a(f"ds_read_b64_tr_b16 {vr(PK+4*i,2)}, v9 offset:{i*KB}\nds_read_b64_tr_b16 {vr(PK+4*i+2,2)}, v9 offset:{i*KB+512}")
        if i:
            j = i - 1
            a(f"s_add_u32 s46, s45, {dsts[j]}\ns_waitcnt lgkmcnt({2 if i < n else 0})")
            if zero_odd and j & 1: a(f"s_mov_b32 exec_lo, 0\nv_mov_b32 v{PK+4*j+2}, 0\nv_mov_b32 v{PK+4*j+3}, 0\ns_mov_b32 exec_lo, -1")
            st1(a, PK+4*j, 46, 0, 'st', v_dst, SC)
            if cs:
                for d in range(4): a(f"v_dot2c_f32_bf16 v{10+(d&1)}, v{PK+4*j+d}, v12")
    stamp(a, 4, None, 'p')
    if cs:
        a("s_nop 2\nv_add_f32 v10, v10, v11"); xhalf(a, 10, 11)
        a(f"s_lshl_b32 s30, s{S_W}, 7\nv_lshl_add_u32 v11, v1, 2, s30\nv_add_u32 v11, {L_MISC}, v11\nds_write_b32 v11, v10\ns_waitcnt lgkmcnt(0)\ns_barrier")
        a(f"v_lshlrev_b32 v11, 2, v1\nv_add_u32 v11, {L_MISC}, v11\nds_read2_b32 v[8:9], v11 offset1:32\nds_read2_b32 v[10:11], v11 offset0:64 offset1:96")
        a("s_waitcnt lgkmcnt(0)\nv_add_f32 v8, v8, v9\nv_add_f32 v10, v10, v11\nv_add_f32 v10, v10, v8")
        skip = a.label('Lcs')
        a(f"s_cmp_lg_u32 s{S_W}, 0\ns_cbranch_scc1 {skip}\ns_mov_b32 exec_hi, 0")
        a(f"buffer_store_dword v10, v{cs}, {srd(WS)}, s48 offen sc1\ns_mov_b32 exec_hi, -1\n{skip}:")
XK, AK, AV = 16, 48, 64
def kv_core(a, wkv, s_dst):
    a("v_mul_f32 v8, v6, v7\nv_sub_f32 v8, 0, v8")
    for i in range(7):
        for d in range(4):
            r = XK + 4*i + d
            a(f"v_lshlrev_b32 v9, 16, v{r}\nv_and_b32 v10, 0xffff0000, v{r}\nv_fma_f32 v9, v9, v7, v8\nv_fma_f32 v10, v10, v7, v8\nv_cvt_pk_bf16_f32 v{r}, v9, v10")
        a("s_nop 1")
        a(f"{MF} {vr(AK,16)}, {R(wkv(i),4)}, {vr(XK+4*i,4)}, {vr(AK,16) if i else 0}")
        a(f"{MF} {vr(AV,16)}, {vr(XK+4*i,4)}, {R(wkv(7+i),4)}, {vr(AV,16) if i else 0}")
    a(f"s_lshl_b32 s30, s{S_W}, 13\ns_add_u32 s30, s30, {L_GU}\nv_add_u32 v8, s30, v0\ns_lshl_b32 s30, s{S_W}, 11\ns_add_u32 s30, s30, {L_GU}\nv_add_u32 v9, s30, v0")
    a(f"v_mov_b32 v10, 1.0\nv_cmp_eq_u32 vcc, 28, v1\ns_cmp_ge_u32 s{S_W}, 2\ns_cselect_b32 s30, 0, 1.0\nv_mov_b32 v11, s30\nv_cndmask_b32 v10, v11, v10, vcc")
    a(f"s_cselect_b32 s44, 0xf0000000, 0\ns_mov_b32 s45, s44\ns_mov_b32 s46, s44\ns_cmp_eq_u32 s{S_W}, 1\ns_cselect_b32 s47, -1, s44\ns_nop 4")
    for q in range(8): a(f"ds_write_b128 v8, {vr(AK+4*q,4)} offset:{q*KB}")
    a("s_waitcnt lgkmcnt(0)\ns_barrier")
    for w in range(4):
        for q in range(2): a(f"ds_read_b128 {vr(16+8*w+4*q,4)}, v9 offset:{w*8*KB+q*KB}")
    for w in range(1, 4):
        a(f"s_waitcnt lgkmcnt({6-2*w})")
        for r in range(8): a(f"v_add_f32 v{16+r}, v{16+r}, v{16+8*w+r}")
    for r in range(8): a(f"v_cndmask_b32 v{16+r}, v{16+r}, v10, s[{44+2*(r>>2)}:{45+2*(r>>2)}]")
    for i in range(4): a(f"v_cvt_pk_bf16_f32 v{24+i}, v{16+2*i}, v{17+2*i}")
    st1(a, 24, s_dst, 0, 'st', 0, SC)
def prep(a, done):
    Lup, Lq, Lo, Ld, Lx = [a.label('Lprep') for _ in range(5)]
    for lim, lab in ((192, Lx), (191, done), (142, Ld), (128, Lo), (112, Lq), (56, Lup)):
        a(f"s_cmp_ge_u32 s2, {lim}\ns_cbranch_scc1 {lab}")
    vm0 = list(a.vm)
    Lgu = a.label('Lprep')
    load_srd(a, 48, 448*3584); a(f"s_mov_b32 s49, s2\ns_mov_b32 s50, 0\ns_branch {Lgu}\n{Lup}:")
    load_srd(a, 56, 448*3584); a(f"s_sub_u32 s49, s2, 56\ns_mov_b32 s50, 64\n{Lgu}:")
    a("s_and_b32 s44, s49, 7\ns_mul_i32 s44, s44, 7\ns_lshr_b32 s49, s49, 3\ns_add_u32 s49, s49, s44")
    a(f"s_mul_i32 s44, s{S_W}, {7*16*3584}\ns_lshl_b32 s45, s49, 6\ns_add_u32 s44, s44, s45")
    a(f"s_mul_i32 s45, s49, {2*28*KB}\ns_mul_i32 s46, s{S_W}, {7*KB}\ns_add_u32 s45, s45, s46\ns_add_u32 s45, s45, {WGU}")
    a(f"v_lshrrev_b32 v6, 4, v1\nv_and_b32 v7, 15, v1\nv_mul_u32_u24 v5, {28*KB}, v6\nv_lshl_add_u32 v5, v2, 9, v5\nv_lshl_add_u32 v5, v7, 4, v5")
    a(f"v_lshlrev_b32 v6, 7, v6\nv_lshl_add_u32 v6, v7, 2, v6\nv_add_u32 v6, s50, v6\ns_lshl_b32 s50, s50, 2\nv_add_u32 v5, s50, v5")
    a(f"s_lshl_b32 s48, s49, 8\ns_add_u32 s48, s48, {CS + 16*128}")
    unit(a, 3584, [16*3584*i for i in range(7)], [KB*i for i in range(7)], 5, 6); a(f"s_branch {done}")
    a.vm = list(vm0)
    a(f"{Lq}:\ns_and_b32 s49, s2, 7\ns_lshl_b32 s49, s49, 1\ns_bfe_u32 s44, s2, 0x10003\ns_add_u32 s49, s49, s44"); load_srd(a, 8, 448*896)
    a(f"s_mul_i32 s44, s{S_W}, {7*16*896}\ns_mul_i32 s45, s49, 56\ns_add_u32 s44, s44, s45")
    a(f"s_mul_i32 s45, s49, {28*KB}\ns_mul_i32 s46, s{S_W}, {7*KB}\ns_add_u32 s45, s45, s46\ns_add_u32 s45, s45, {WQF}")
    a(f"v_lshlrev_b32 v6, 2, v1\ns_lshl_b32 s48, s49, 7\ns_add_u32 s48, s48, {CS}")
    unit(a, 896, [16*896*i for i in range(7)], [KB*i for i in range(7)], 0, 6); a(f"s_branch {done}")
    a.vm = list(vm0)
    a(f"{Lo}:\ns_and_b32 s49, s2, 7\ns_lshl_b32 s49, s49, 1\ns_bfe_u32 s44, s2, 0x10003\ns_add_u32 s49, s49, s44"); load_srd(a, 32, 448*896)
    a("s_lshr_b32 s45, s49, 1\ns_add_u32 s45, s45, 6\ns_cmp_ge_u32 s49, 12\ns_cselect_b32 s49, s45, s49")
    a(f"s_mul_i32 s44, s{S_W}, {4*28*896}\ns_lshl_b32 s45, s49, 6\ns_add_u32 s44, s44, s45")
    a(f"s_lshl_b32 s45, s49, 15\ns_lshl_b32 s46, s{S_W}, 13\ns_add_u32 s45, s45, s46\ns_add_u32 s45, s45, {WOF}")
    unit(a, 896, [(28*(i >> 1) + 16*(i & 1))*896 for i in range(8)], [i*KB for i in range(8)], 0, None, True)
    a(f"s_branch {done}")
    a.vm = list(vm0)
    a(f"{Ld}:\ns_sub_u32 s49, s2, 142"); load_srd(a, 64, 1792*896)
    a(f"s_lshl_b32 s49, s49, 2\ns_add_u32 s49, s49, s{S_W}\ns_lshr_b32 s50, s49, 1\ns_mul_i32 s50, s50, 9363\ns_lshr_b32 s50, s50, 16\ns_mul_i32 s51, s50, 14\ns_sub_u32 s51, s49, s51")
    a(f"s_mul_i32 s44, s50, {8*16*896}\ns_lshl_b32 s45, s51, 6\ns_add_u32 s44, s44, s45")
    a(f"s_mul_i32 s45, s51, {112*KB}\ns_lshl_b32 s46, s50, 13\ns_add_u32 s45, s45, s46\ns_add_u32 s45, s45, {WDF}")
    unit(a, 896, [16*896*i for i in range(8)], [KB*i for i in range(8)], 0); a(f"s_branch {done}")
    a.vm = list(vm0)
    a(f"{Lx}:\ns_sub_u32 s49, s2, 192"); load_srd(a, 0, 2048*896); load_srd(a, 16, 448*56, SRD_B); load_srd(a, 24, 448*56, SRD_KV)
    a(f"v_mul_u32_u24 v4, 896, v1\nv_lshl_add_u32 v4, v2, 4, v4\ns_mul_i32 s44, s49, {32*896}\ns_mul_i32 s45, s{S_W}, 224\ns_add_u32 s44, s44, s45")
    a(f"s_mul_i32 s45, s{S_W}, {7*896}\ns_mul_i32 s47, s{S_W}, {14*KB}\ns_waitcnt lgkmcnt(0)")
    for i in range(7): ld1(a, XK+4*i, 44, 32*i, 'x', 4, '', SRD_A)
    for m, s in enumerate((SRD_B, SRD_KV)):
        for i in range(7):
            if i % 4 == 0: a(f"s_add_u32 s46, s45, {i*KB}\ns_add_u32 m0, s47, {(7*m+i)*KB}\ns_nop 0")
            a.v(f"buffer_load_dwordx4 v0, {srd(s)}, s46 offen offset:{(i%4)*KB} lds", 'w')
    tr_addr(a, 5, 56, 47)
    a(f"s_mul_i32 s44, s49, {28*KB}\ns_mul_i32 s45, s{S_W}, {7*KB}\ns_add_u32 s44, s44, s45\ns_add_u32 s44, s44, {XA}")
    a("v_mov_b32 v6, 0\nv_mov_b32 v7, 0\nv_mov_b32 v12, 0x3f803f80")
    a.wait('x'); stamp(a, 5, None, 'p')
    for i in range(7):
        r = XK + 4*i
        a(f"v_permlane32_swap_b32 v{r}, v{r+2}\nv_permlane32_swap_b32 v{r+1}, v{r+3}")
        if i == 4: a("s_add_u32 s44, s44, 4096")
        a("s_nop 0")
        st1(a, r, 44, (i % 4)*KB, 'st', 0, SC)
        for d in range(4): a(f"v_dot2c_f32_bf16 v6, v{r+d}, v12\nv_dot2c_f32_bf16 v7, v{r+d}, v{r+d}")
    a("s_nop 2"); xhalf(a, 6, 8); xhalf(a, 7, 8)
    a(f"s_lshl_b32 s30, s{S_W}, 8\nv_lshl_add_u32 v9, v1, 3, s30\nv_add_u32 v9, {L_MISC}, v9\ns_mov_b32 exec_hi, 0\nds_write_b64 v9, v[6:7]\ns_mov_b32 exec_hi, -1")
    a(f"s_mul_i32 s44, s49, {14*256}\ns_lshl_b32 s45, s{S_W}, 10\ns_add_u32 s44, s44, s45\ns_add_u32 s44, s44, {SA}")
    a("v_lshrrev_b32 v8, 1, v0\nv_mov_b32 v10, 0\nv_mov_b32 v11, 0\ns_mov_b32 exec_lo, 0\nv_mov_b32 v6, 0\nv_mov_b32 v7, 0\ns_mov_b32 exec_lo, -1")
    a.v(f"buffer_store_dwordx2 v[6:7], v8, {srd(WS)}, s44 offen sc1")
    sk = a.label('Lsz')
    a(f"s_cmp_eq_u32 s{S_W}, 3\ns_cbranch_scc1 {sk}\nbuffer_store_dwordx2 v[10:11], v8, {srd(WS)}, s44 offen offset:512 sc1\n{sk}:")
    a.wait('w'); stamp(a, 6, None, 'p')
    W = 132
    for i in range(14):
        o = (i // 7)*7*KB + (i % 7)*896
        a(f"ds_read_b64_tr_b16 {vr(W+4*i,2)}, v5 offset:{o}\nds_read_b64_tr_b16 {vr(W+4*i+2,2)}, v5 offset:{o+448}")
    a(f"s_waitcnt lgkmcnt(0)\ns_barrier\nv_lshlrev_b32 v9, 3, v1\nv_add_u32 v9, {L_MISC}, v9")
    for w in range(4): a(f"ds_read_b64 {vr(100+2*w,2)}, v9 offset:{256*w}")
    sk = a.label('Lkw')
    a(f"s_cmp_lg_u32 s49, 0\ns_cbranch_scc1 {sk}\ns_add_u32 s44, s47, {WKF}")
    for i in range(14):
        if i and i % 4 == 0: a("s_add_u32 s44, s44, 4096")
        a(f"buffer_store_dwordx4 {vr(W+4*i,4)}, v0, {srd(WS)}, s44 offen offset:{(i%4)*KB} sc1")
    a(f"{sk}:\ns_waitcnt lgkmcnt(0)\nv_add_f32 v100, v100, v102\nv_add_f32 v101, v101, v103\nv_add_f32 v104, v104, v106\nv_add_f32 v105, v105, v107")
    a("v_add_f32 v6, v100, v104\nv_add_f32 v7, v101, v105")
    for i in stats_tail(6, 7): a(i)
    a(f"s_lshl_b32 s48, s49, 12\ns_lshl_b32 s45, s{S_W}, 10\ns_add_u32 s48, s48, s45\ns_add_u32 s48, s48, {KVO}")
    stamp(a, 7, None, 'p')
    kv_core(a, lambda i: W + 4*i, 48)
    stamp(a, 8, None, 'p')
```

```python
from p_common import *
from p_prep import kv_core, XK
Q, S, P, O, KVR, RES = 16, 48, 80, 96, 160, 224
def wo_reg(i):
    return 256+224+4*i if i < 8 else 232+4*(i-8) if i < 14 else KVR+4*(i-14) if i < 30 else P+8+4*(i-30)
WQR = [16+4*i for i in range(8)] + [64+4*i for i in range(8)] + [136+4*i for i in range(6)]
CU = -1 if 'C' in OPT else 50
NT = ' nt' if 'N' in OPT else ''
def kv_ld(a, b, isv):
    if isv == 0: a(f"s_mov_b32 s26, {b*4096}")
    else: a(f"s_mov_b32 s27, {b*4096}")
    for i in range(2):
        a.v(f"buffer_load_dwordx4 {R(KVR+16*(b&3)+8*isv+4*i,4)}, v0, {srd(SRD_KV)}, s{26+isv} offen offset:{(2*isv+i)*KB}", ('kv', b, isv))
def kv_srd(a):
    a(f"s_lshl_b32 s24, s{S_W}, 16\ns_add_u32 s24, s24, s{S_LB}\ns_add_u32 s24, s24, {KVO}\ns_add_u32 s{SRD_KV}, s{WS}, s24\ns_addc_u32 s{SRD_KV+1}, s{WS+1}, 0")
    a(f"s_mov_b32 s{SRD_KV+2}, 65536\ns_mov_b32 s{SRD_KV+3}, 0x20000")
def kv_first(a):
    for b in range(4):
        kv_ld(a, b, 0)
        if b < 3: kv_ld(a, b, 1)
def qk(a, h, slot, sb, half):
    a(f"{MF} {vr(S+16*sb,16)}, {R(KVR+16*slot+4*half,4)}, {vr(Q+8*h+4*half,4)}, {vr(S+16*sb,16) if half else 0}")
def pv(a, h, slot, pb, half, first=False):
    a(f"{MF} {R(O+16*h,16)}, {R(KVR+16*slot+8+4*half,4)}, {vr(P+8*pb+4*half,4)}, {0 if first and not half else R(O+16*h,16)}")
def dma7(a, t, slot, tag):
    def f(i):
        def g():
            if i % 4 == 0: a(f"s_add_u32 m0, s45, {slot + i*KB}\ns_add_u32 s46, s44, {t*28*KB + i*KB}")
            a.v(f"buffer_load_dwordx4 v0, {srd(WS)}, s46 offen offset:{(i%4)*KB}{NT} lds", tag)
        return g
    return [f(i) for i in range(7)]
def wd(a, k, fi):
    def g():
        if k % 4 == 0: a("s_add_u32 s53, s52, s55" if fi else f"s_add_u32 s52, s54, {k*KB}")
        ld1(a, 256 + 8*k + 4*fi, 52+fi, (k % 4)*KB, 'wd', 0, NT)
    return g
def att_prefetch(a, first):
    a(f"s_mul_i32 s45, s{S_W}, {7*KB}\ns_mul_i32 s44, s{S_JJ}, {7*28*KB}\ns_add_u32 s44, s44, s45\ns_add_u32 s44, s44, {WGU}")
    a(f"s_lshl_b32 s47, s{S_Q}, 2\ns_add_u32 s47, s47, s{S_W}\ns_min_u32 s47, s47, 13\ns_lshl_b32 s48, s47, 15\ns_add_u32 s48, s48, {WOF}")
    a(f"s_mul_i32 s50, s{S_TB}, {28*KB}\ns_lshl_b32 s51, s47, 11\ns_add_u32 s50, s50, s51\ns_add_u32 s50, s50, {XA}")
    a(f"s_mul_i32 s51, s{S_JJ}, {7*128}\ns_add_u32 s51, s51, {CS+16*128}")
    def wo(i):
        def g():
            if i % 4 == 0 or i == 14: a(f"s_add_u32 s49, s48, {(i & ~3)*KB}")
            ld1(a, wo_reg(i), 49, (i % 4)*KB, 'wo')
        return g
    def cs():
        a(f"s_mov_b32 m0, {L_CS}\ns_nop 0"); a.v(f"buffer_load_dwordx4 v0, {srd(WS)}, s51 offen lds", 'cs')
    a.late = [wo(i) for i in range(14, 32)]
    pf = [wo(i) for i in range(14)] + [lambda i=i: ld1(a, RES+4*i, 50, i*KB, 'res', 0, SL) for i in range(2)] + [cs]
    for t in range(3): pf += dma7(a, t, L_GU + t*28*KB, ('T', t))
    if first:
        a(f"s_mul_i32 s54, s{S_DFP}, {224*KB}\ns_mul_i32 s52, s{S_W}, {28*KB}\ns_add_u32 s54, s54, s52\ns_add_u32 s54, s54, {WDF}")
        a(f"s_bitcmp1_b32 s{S_W}, 0\ns_cselect_b32 s52, {112*KB}, 0\ns_lshl_b32 s55, s52, 1\ns_sub_u32 s55, {112*KB}, s55\ns_add_u32 s54, s54, s52")
        a(f"s_add_u32 s24, s{S_GTB}, s{S_W}\ns_lshl_b32 s24, s24, 4\ns_add_u32 s24, s24, s{S_JJ}\ns_mul_i32 s24, s24, {7*KB}\ns_add_u32 s24, s24, {HO}")
        a(f"s_add_u32 s16, s{WS}, s24\ns_addc_u32 s17, s{WS+1}, 0")
        pf += [wd(a, k, fi) for k in range(28) for fi in range(2)]
    return pf
def main_loop(a, pf, first):
    a.wait(('kv', 0, 0))
    qk(a, 0, 0, 0, 0); qk(a, 0, 0, 0, 1)
    a("s_nop 10")
    pf = list(pf)
    for u in range(64):
        kb, h = u >> 2, u & 3
        sr_, pb = S + 16*(u & 1), P + 8*(u & 1)
        for q in range(4):
            if q == 0 and h == 3 and kb < 15: a.wait(('kv', kb+1, 0))
            if q == 2 and h == 1: a.wait(('kv', kb, 1))
            if q < 2:
                if u < 63: qk(a, (u+1) & 3, ((u+1) >> 2) & 3, (u+1) & 1, q)
            elif u: pv(a, (u-1) & 3, ((u-1) >> 2) & 3, (u-1) & 1, q-2, u <= 4)
            n0 = len(a.lines)
            if q == 1 and h == 3 and kb + 4 < 16: kv_ld(a, kb+4, 0)
            if q == 2 and h == 1 and kb + 3 < 16: kv_ld(a, kb+3, 1)
            if (q == 3 or (q == 0 and u % 2 == 0 and first)) and pf: pf.pop(0)()
            if u > 50 and u % 2 and q in (1, 2): a.late.pop(0)()
            if u == CU and q == 2 and first:
                a(f"s_getpc_b64 s[24:25]\nLpc2:\ns_and_b32 s30, s{S_TB}, 7\ns_lshl_b32 s30, s30, 2\ns_add_u32 s30, s30, s{S_Q}\ns_lshl_b32 s30, s30, 2\ns_add_u32 s30, s30, s{S_W}\ns_lshl_b32 s30, s30, 10")
                a(f"v_add_u32 v8, s30, v0\nv_min_u32 v8, Lcode_end-Lpc2-16, v8\nv_mov_b32 v9, s25\nv_add_co_u32 v8, vcc, s24, v8\nv_addc_co_u32 v9, vcc, 0, v9, vcc")
                a.v("global_load_dword v12, v[8:9], off")
            if u == 50 and q == 1 and first:
                a("v_lshlrev_b32 v10, 3, v0\ns_mov_b32 exec_hi, 0\ns_mov_b32 exec_lo, 0xfffffff")
                a.v("global_load_dword v12, v10, s[16:17] offset:3584"); a("s_mov_b64 exec, -1")
            if u < 56 and q == 1 and u % 2 == 0 and first: a(f"s_load_dwordx2 s[18:19], s[16:17], {64*u+60}")
            for e in range(4): a(f"v_exp_f32 v{sr_+4*q+e}, v{sr_+4*q+e}")
            cv = [] if q == 0 else [2*(q-1), 2*(q-1)+1] + ([6, 7] if q == 3 else [])
            for c in cv: a(f"v_cvt_pk_bf16_f32 v{pb+c}, v{sr_+2*c}, v{sr_+2*c+1}")
    assert not pf
    a("s_nop 0")
    pv(a, 3, 3, 1, 0); pv(a, 3, 3, 1, 1)
    a.after = a.late
def rot(a, i, shift, mul, v, base=0):
    a(f"s_add_u32 s30, s{S_W}, {i}\ns_and_b32 s30, s30, 3\ns_mul_i32 s30, s30, {mul}\nv_add_u32 v{v}, s30, v{base}")
def max_pass(a):
    for h in range(4): a(f"v_mov_b32 v{P+h}, 0xff800000")
    a("s_mov_b32 s26, 0\ns_mov_b32 s28, 16")
    L = a.label('Lmax')
    a(f"{L}:")
    for i in range(2): a(f"buffer_load_dwordx4 {R(KVR+4*i,4)}, v0, {srd(SRD_KV)}, s26 offen offset:{i*KB}")
    a("s_add_u32 s26, s26, 4096\ns_waitcnt vmcnt(0)")
    for h in range(4):
        qk(a, h, 0, 0, 0); qk(a, h, 0, 0, 1); a("s_nop 12")
        for r in range(8): a(f"v_max3_f32 v{P+h}, v{S+2*r}, v{S+2*r+1}, v{P+h}")
    a(f"s_sub_u32 s28, s28, 1\ns_cmp_lg_u32 s28, 0\ns_cbranch_scc1 {L}")
    a(f"s_lshl_b32 s24, s{S_W}, 8\nv_add_u32 v6, s24, v13\nv_lshlrev_b32 v7, 2, v1")
    for h in range(4): rot(a, h, 0, KB, 5, 6); a(f"ds_write_b32 v5, v{P+h} offset:{L_Q}")
    a("s_waitcnt lgkmcnt(0)\ns_barrier")
    for h in range(4):
        rot(a, h, 0, KB, 5, 7)
        for i in range(8): a(f"ds_read_b32 v{S+i}, v5 offset:{L_Q+128*i}")
        a("s_waitcnt lgkmcnt(0)")
        for i in (1, 3, 5): a(f"v_max3_f32 v{S}, v{S+i}, v{S+i+1}, v{S}")
        a(f"v_max_f32 v{S}, v{S}, v{S+7}\nv_sub_f32 v8, 0, v{S}")
        a("v_and_b32 v9, 0xffff0000, v8\nv_sub_f32 v8, v8, v9\nv_and_b32 v10, 0xffff0000, v8\nv_sub_f32 v8, v8, v10")
        a(f"v_lshrrev_b32 v9, 16, v9\ns_mov_b32 exec_lo, 0\nv_or_b32 v{Q+8*h+6}, v9, v10\nv_lshrrev_b32 v{Q+8*h+7}, 16, v8\ns_mov_b32 exec_lo, -1")
    a("s_barrier")
def finish(a, retry):
    for i in range(1, 4): rot(a, i, 0, 12*KB, 4+i)
    rot(a, 0, 0, 12*KB, 8)
    for f in a.after: f()
    for i in range(1, 4):
        if i == 3: a("s_nop 7")
        for q in range(4): a(f"ds_write_b128 v{4+i}, {R(O+16*i+4*q,4)} offset:{(4*(i-1)+q)*KB}")
    a("s_waitcnt lgkmcnt(0)\ns_barrier")
    for j in range(12): a(f"ds_read_b128 {vr(O+16+4*j,4)}, v8 offset:{j*KB}")
    a(f"s_mul_i32 s24, s{S_TB}, {OSTR}\ns_lshl_b32 s25, s{S_Q}, 13\ns_add_u32 s24, s24, s25\ns_lshl_b32 s25, s{S_W}, 11\ns_add_u32 s24, s24, s25")
    a(f"s_add_u32 s24, s24, {OO}")
    for w in range(1, 4):
        a(f"s_waitcnt lgkmcnt({12-4*w})")
        pk_add(a, O+12, O+16*w+12, 4); pk_add(a, O, O+16*w, 12)
        if w == 3: a(f"v_mov_b32 v6, v{O+12}\nv_mov_b32 v5, v{O+12}\nv_mov_b32 v8, 0\nv_mov_b32 v9, 0x21800000")
    a("v_permlane32_swap_b32 v6, v5\nv_mov_b32 v10, 0x5d800000\ns_nop 0\nv_rcp_f32 v7, v5")
    a(f"v_cmp_nge_f32 vcc, v5, v9\nv_cmp_nle_f32 s[30:31], v5, v10")
    for r in range(16): a(f"v_mul_f32 v{O+r}, v{O+r}, v7\nv_fmac_f32 v8, 0, v{O+r}")
    a(f"s_or_b64 s[30:31], s[30:31], vcc\nv_cmp_u_f32 vcc, v8, v8")
    for i in range(8): a(f"v_cvt_pk_bf16_f32 v{P+i}, v{O+2*i}, v{O+2*i+1}")
    a(f"s_or_b64 s[30:31], s[30:31], vcc\ns_mov_b32 exec_lo, 0\nv_mov_b32 v{P+6}, 0\nv_mov_b32 v{P+7}, 0\ns_mov_b32 exec_lo, -1")
    st1(a, P, 24, 0); st1(a, P+4, 24, KB)
    a(f"s_cmp_lg_u64 s[30:31], 0\ns_cselect_b32 s30, 1, 0\ns_andn2_b32 s30, s30, s29\nv_mov_b32 v7, s30\ns_lshl_b32 s30, s{S_W}, 2\ns_add_u32 s30, s30, {L_MISC}\nv_mov_b32 v8, s30")
    a(f"ds_write_b32 v8, v7\ns_waitcnt lgkmcnt(0)\ns_barrier\nv_mov_b32 v8, {L_MISC}\nds_read_b128 v[8:11], v8")
    a(f"s_waitcnt lgkmcnt(0)\nv_or3_b32 v8, v8, v9, v10\nv_or_b32 v8, v8, v11\ns_nop 0\nv_readfirstlane_b32 s30, v8\ns_nop 3\ns_cmp_lg_u32 s30, 0\ns_cbranch_scc1 {retry}")
def x_loads(a):
    a(f"s_mul_i32 s25, s{S_W}, {7*KB}\ns_mul_i32 s24, s{S_TB}, {28*KB}\ns_add_u32 s24, s24, s25\ns_add_u32 s24, s24, {XA}")
    dman(a, 7, 24, 25, 'x', SL)
    a(f"s_mul_i32 s24, s{S_TB}, {14*256}\ns_add_u32 s24, s24, {SA}")
    ld_stats(a, 100, 24, 8, 'stat')
W0 = 10
def wq1(a, i):
    if i and i % 4 == 0: a("s_add_u32 s29, s29, 4096")
    ld1(a, WQR[i % 22], 29, (i % 4)*KB, ('wq', i))
def wq_loads(a):
    a(f"s_lshl_b32 s25, s{S_Q}, 2\ns_add_u32 s25, s25, s{S_W}\ns_lshl_b32 s28, s25, 7\ns_add_u32 s28, s28, {CS}")
    a(f"s_mul_i32 s29, s25, {28*KB}\ns_add_u32 s29, s29, {WQF}")
    for i in range(W0): wq1(a, i)
WQ1 = [132] + [136+4*i for i in range(22)] + [88, 92, 96, 80, 84]
G1, G2, G3, G4 = (5, 9, 17, 22) if 'G' not in OPT else (4, 8, 14, 18)
IP = 8 if 'I' in OPT else 0 if 'J' not in OPT else 4
def wq_pre(a, i0, i1):
    if i0 == 0:
        a(f"s_lshl_b32 s29, s{S_Q}, 2\ns_add_u32 s29, s29, s{S_W}\ns_lshl_b32 s28, s29, 7\ns_add_u32 s28, s28, {CS}")
        a(f"s_mul_i32 s29, s29, {28*KB}\ns_add_u32 s29, s29, {WQF}")
    for i in range(i0, i1):
        if i and i % 4 == 0: a("s_add_u32 s29, s29, 4096")
        ld1(a, WQ1[i], 29, (i % 4)*KB, ('wq', i))
def q_proj(a, extra=(), before_barrier=None, pre=None):
    B = 224
    if not pre: extra = [lambda i=i: wq1(a, i) for i in range(W0, 28)] + [lambda: ld_cs(a, 116, 28, 9, 'qcs')] + list(extra)
    for i in range(8): a(f"ds_read_b128 {vr(B+4*i,4)}, v0 offset:{i*KB}")
    a(f"v_mul_f32 v7, {fhex(QSCALE)}, v7")
    for i in range(28):
        if pre and i != G4: a(f"s_waitcnt lgkmcnt({min(7, 27-i)})")
        elif pre: a(f"s_waitcnt vmcnt(1) lgkmcnt({min(7, 27-i)})")
        else: a.wait(('wq', i), f" lgkmcnt({min(7, 27-i)})")
        a(f"{MF} {vr(S,16)}, {R(WQ1[i] if pre else WQR[i % 22],4)}, {vr(B+4*(i%8),4)}, {vr(S,16) if i else 0}")
        if pre and i == IP: pre()
        if i + 8 < 28: a(f"ds_read_b128 {vr(B+4*(i%8),4)}, v0 offset:{(i+8)*KB}")
        if extra: extra.pop(0)()
    while extra: extra.pop(0)()
    stamp(a, 12, 0, 'p')
    rot(a, 0, 0, 2*KB, 5)
    for i in range(1, 4): rot(a, i, 0, 2*KB, 132+i)
    if not pre: a.wait('qcs')
    for r in range(16): a(f"v_fma_f32 v{S+r}, -v6, v{116+r}, v{S+r}\nv_mul_f32 v{S+r}, v7, v{S+r}")
    for i in range(8): a(f"v_cvt_pk_bf16_f32 v{P+i}, v{S+2*i}, v{S+2*i+1}")
    a(f"s_mov_b32 exec_lo, 0\nv_mov_b32 v{P+6}, 0\nv_mov_b32 v{P+7}, 0\ns_mov_b32 exec_lo, -1")
    a(f"ds_write_b128 v5, {vr(P,4)} offset:{L_Q}\nds_write_b128 v5, {vr(P+4,4)} offset:{L_Q+KB}")
    if before_barrier: before_barrier()
    a("s_waitcnt lgkmcnt(0)\ns_barrier")
    for i in range(4):
        for j in range(2): a(f"ds_read_b128 {vr(Q+8*i+4*j,4)}, v{132+i if i else 5} offset:{L_Q+j*KB}")
def pro0(a):
    x_loads(a); wq_loads(a); kv_srd(a)
    a.wait('stat'); stamp(a, 11, None, 'p'); a("s_barrier")
    fin_stats(a, 100, 6, 7, 8)
    q_proj(a, [lambda b=b, v=v: kv_ld(a, b, v) for b in range(4) for v in range(2) if 2*b+v < 7])
    a("s_waitcnt lgkmcnt(0)")
def pro1(a):
    a(f"s_lshr_b32 s24, s{S_JJ}, 3\ns_mul_i32 s24, s24, 28\ns_bfe_u32 s25, s{S_JJ}, 0x10002\ns_lshl_b32 s25, s25, 1\ns_add_u32 s24, s24, s25")
    a(f"s_mov_b32 s{S_MASK}, 0x3333333\ns_mov_b32 s{S_MASK+1}, 0\ns_lshl_b64 s[{S_MASK}:{S_MASK+1}], s[{S_MASK}:{S_MASK+1}], s24")
    wq_pre(a, G3, G4)
    await_(a); next_tag(a)
    stamp(a, 12)
    x_loads(a); kv_srd(a)
    nokv, kv, qp, dm = a.label('Lnokv'), a.label('Lkv'), a.label('Lqp'), a.label('Ldm')
    a(f"s_cmp_eq_u32 s{S_Q}, 0\ns_cbranch_scc1 {kv}")
    vm = list(a.vm)
    wq_pre(a, G4, 28); ld_cs(a, 116, 28, 9, 'qcs')
    a.wait('stat'); fin_stats(a, 100, 6, 7, 8)
    a(f"s_barrier\ns_branch {qp}\n{kv}:")
    a.vm = vm
    a.wait('stat'); fin_stats(a, 100, 6, 7, 8)
    a(f"s_mul_i32 s24, s{S_W}, {7*KB}\nv_add_u32 v8, s24, v0")
    for i in range(7): a(f"ds_read_b128 {vr(XK+4*i,4)}, v8 offset:{i*KB}")
    a(f"s_lshl_b32 s48, s{S_TB}, 12\ns_lshl_b32 s24, s{S_W}, 10\ns_add_u32 s48, s48, s24\ns_add_u32 s48, s48, s{S_LB}\ns_add_u32 s48, s48, {KVO}\ns_waitcnt lgkmcnt(0)")
    kv_core(a, lambda i: 256+224+4*i if i < 8 else 232+4*(i-8), 48)
    wq_pre(a, G4, 28); ld_cs(a, 116, 28, 9, 'qcs')
    nst = a.n_after('st')
    a(f"{qp}:")
    def pub():
        a(f"s_cmp_lg_u32 s{S_Q}, 0\ns_cbranch_scc1 {dm}")
        a(f"s_waitcnt vmcnt({nst})\ns_barrier\ns_cmp_lg_u32 s{S_W}, 0\ns_cbranch_scc1 {dm}\ns_lshl_b32 s24, s{S_TB}, 6\ns_add_u32 s24, s24, {GF2}")
        publish_global(a, 24, 0x40)
        stamp(a, 13)
        a(f"s_branch {nokv}\n{dm}:\nbuffer_load_dword v11, v13, {srd(WS)}, s28 offen\n{nokv}:")
    def poll():
        sk = a.label('Lnp')
        a(f"s_cmp_lg_u32 s{S_W}, 0\ns_cbranch_scc1 {sk}")
        poll_global(a, GF2, 1, 0x40)
        a(f"{sk}:")
    q_proj(a, [], poll, pub)
    kv_first(a)
    a("s_waitcnt lgkmcnt(0)")
    stamp(a, 14)
def oproj(a):
    a(f"s_lshr_b32 s24, s{S_JJ}, 2\ns_lshl_b32 s24, s24, 4\ns_mov_b32 s{S_MASK}, 0xffff\ns_mov_b32 s{S_MASK+1}, 0\ns_lshl_b64 s[{S_MASK}:{S_MASK+1}], s[{S_MASK}:{S_MASK+1}], s24")
    a(f"s_lshl_b32 s25, s{S_W}, 13\ns_mul_i32 s24, s{S_TB}, {OSTR}\ns_add_u32 s24, s24, s25\ns_add_u32 s24, s24, {OO}")
    await_(a); next_tag(a)
    stamp(a, 6, 0)
    dman(a, 8, 24, 25, 'o', SL)
    a(f"s_mul_i32 s24, s{S_TB}, {14*256}\ns_lshl_b32 s25, s47, 8\ns_add_u32 s25, s25, s24\ns_add_u32 s25, s25, {SB}\ns_add_u32 s24, s50, {XB-XA}")
    init_resid(a, 16, RES)
    a.wait0(); a("s_barrier")
    idle, join = a.label('Lidle'), a.label('Ljoin')
    a(f"s_lshl_b32 s30, s{S_Q}, 2\ns_add_u32 s30, s30, s{S_W}\ns_cmp_ge_u32 s30, 14\ns_cbranch_scc1 {idle}")
    B, A = 48, 16
    for i in range(8): a(f"ds_read_b128 {vr(B+4*i,4)}, v0 offset:{i*KB}")
    for i in range(32):
        a(f"s_waitcnt lgkmcnt({min(7, 31-i)})")
        a(f"{MF} {vr(A,16)}, {R(wo_reg(i),4)}, {vr(B+4*(i%8),4)}, {vr(A,16)}")
        if i + 8 < 32: a(f"ds_read_b128 {vr(B+4*(i%8),4)}, v0 offset:{(i+8)*KB}")
    a("s_barrier\ns_nop 10")
    pack(a, A, RES)
    store_x(a, A, RES, 32, 24, 25, 5)
    publish(a)
    a(f"s_branch {join}\n{idle}:\ns_barrier\n{join}:")
    stamp(a, 7, 0)
```

```python
from asmlib import *
import struct
KB = 1024
WQF = 0
WKF = WQF + 16*28*KB
WOF = WKF + 56*KB
WGU = WOF + 14*32*KB
WDF = WGU + 112*28*KB
CS  = WDF + 14*112*KB
ACT = CS + 17*KB
XA = XB = ACT; SA = SB = XA + 64*28*KB
HO = OO = SB + 64*14*256; OSTR = 112*KB
KVO = HO + 64*112*KB; LSTR = 64*4*KB
GF1 = KVO + 2*LSTR; GF2 = GF1 + 16*KB; FL = GF2 + 4*KB; EPOCH = FL + 8*KB
WS_END = EPOCH + KB
XF = [XA, XB, XA, XB]; KVF = [KVO, LSTR+KVO]; OF = [OO, OO]; HF = [HO, HO]
MF = "v_mfma_f32_32x32x16_bf16"
OOB = 0x40000000
LOG2E = 1.4426950408889634
QSCALE = (28 ** -0.5) * LOG2E
def fhex(x): return hex(struct.unpack('<I', struct.pack('<f', x))[0])
S_W, S_TB, S_Q, S_JJ, S_LB = 3, 4, 5, 6, 7
WS, SRD_A, SRD_B, SRD_KV = 8, 12, 16, 20
S_B, S_MODE, S_FB, S_FO, S_TAG, S_L, S_GTB, S_SPIN, S_DTP, S_DFP, S_MASK, S_G = 32, 33, 34, 35, 36, 37, 38, 39, 40, 41, 42, 44
import os
OPT = os.environ.get('OPT', '')
SC = ' sc1'
SO = ' sc1' if 'O' in OPT else ''
SL = '' if 'n' in OPT else ' sc1'
L_Q, L_GU, L_CS, L_W, L_KVR, L_TR, L_MISC, LDS_SIZE = 48*KB, 56*KB, 140*KB, 56*KB, 112*KB, 144*KB, 148*KB, 152*KB

class A2(Asm):
    def __init__(self):
        super().__init__(); self.vm = []
    def v(self, s, tag=None):
        self(s); self.vm.append(tag)
    def n_after(self, tag):
        idx = max(i for i, t in enumerate(self.vm) if t == tag)
        return len(self.vm) - 1 - idx
    def wait(self, tag, extra=''):
        n = self.n_after(tag)
        self(f"s_waitcnt vmcnt({min(n, 63)}){extra}")
    def wait0(self):
        self("s_waitcnt vmcnt(0)"); self.vm = []
def srd(b): return f"s[{b}:{b+3}]"
def ld1(a, dst, soff, imm, tag, voff=0, fl='', s=WS):
    a.v(f"buffer_load_dwordx4 {R(dst,4)}, v{voff}, {srd(s)}, s{soff} offen offset:{imm}{fl}", tag)
def ldn(a, dst, n, soff, tag, fl='', i0=0):
    for i in range(i0, i0+n):
        if i and i % 4 == 0: a(f"s_add_u32 s{soff}, s{soff}, 4096")
        ld1(a, dst + 4*i, soff, (i % 4)*KB, tag(i) if callable(tag) else tag, 0, fl)
def dman(a, n, soff, sm0, tag, fl='', i0=0):
    for i in range(i0, i0+n):
        if i % 4 == 0:
            if i: a(f"s_add_u32 s{soff}, s{soff}, 4096\ns_add_u32 s{sm0}, s{sm0}, 4096")
            a(f"s_mov_b32 m0, s{sm0}\ns_nop 0")
        a.v(f"buffer_load_dwordx4 v0, {srd(WS)}, s{soff} offen offset:{(i%4)*KB}{fl} lds", tag)
def st1(a, src, soff, imm, tag='st', voff=0, fl=''):
    a.v(f"buffer_store_dwordx4 {R(src,4)}, v{voff}, {srd(WS)}, s{soff} offen offset:{imm}{fl}", tag)
def ld_stats(a, dst, soff, vtmp, tag, fl=SL):
    a(f"v_mul_u32_u24 v{vtmp}, {7*256}, v2\nv_lshl_add_u32 v{vtmp}, v1, 3, v{vtmp}")
    for i in range(7):
        a.v(f"buffer_load_dwordx2 {vr(dst+2*i,2)}, v{vtmp}, {srd(WS)}, s{soff} offen offset:{i*256}{fl}", tag)
def stats_tail(mu, rs):
    return [f"v_mul_f32 v{mu}, {fhex(1/448)}, v{mu}", f"v_mul_f32 v{rs}, {fhex(1/448)}, v{rs}",
            f"v_fma_f32 v{rs}, -v{mu}, v{mu}, v{rs}", f"v_max_f32 v{rs}, 0, v{rs}", f"v_add_f32 v{rs}, {fhex(1e-5)}, v{rs}",
            f"v_rsq_f32 v{rs}, v{rs}", "s_nop 0"]
def fin_stats_list(src, mu, rs, t):
    o = []
    for i in (1, 3, 5): o += [f"v_add_f32 v{src+2*i}, v{src+2*i}, v{src+2*i+2}", f"v_add_f32 v{src+2*i+1}, v{src+2*i+1}, v{src+2*i+3}"]
    o += [f"v_add_f32 v{src}, v{src}, v{src+2}", f"v_add_f32 v{src+1}, v{src+1}, v{src+3}",
          f"v_add_f32 v{src+6}, v{src+6}, v{src+10}", f"v_add_f32 v{src+7}, v{src+7}, v{src+11}",
          f"v_add_f32 v{mu}, v{src}, v{src+6}", f"v_add_f32 v{rs}, v{src+1}, v{src+7}",
          f"v_mov_b32 v{t}, v{mu}", f"v_mov_b32 v{t+1}, v{rs}", "s_nop 1",
          f"v_permlane32_swap_b32 v{t}, v{mu}", f"v_permlane32_swap_b32 v{t+1}, v{rs}", "s_nop 1",
          f"v_add_f32 v{mu}, v{mu}, v{t}", f"v_add_f32 v{rs}, v{rs}, v{t+1}"]
    return o + stats_tail(mu, rs)
def fin_stats(a, src, mu, rs, t):
    for i in fin_stats_list(src, mu, rs, t): a(i)
def ld_cs(a, dst, soff, vtmp, tag):
    a(f"v_lshlrev_b32 v{vtmp}, 4, v2")
    for q in range(4): ld1(a, dst+4*q, soff, 32*q, tag, vtmp)
def init_resid(a, acc, res):
    for i in range(8): a(f"v_lshlrev_b32 v{acc+2*i}, 16, v{res+i}\nv_and_b32 v{acc+2*i+1}, 0xffff0000, v{res+i}")
def pack(a, acc, res):
    for i in range(8): a(f"v_cvt_pk_bf16_f32 v{res+i}, v{acc+2*i}, v{acc+2*i+1}")
def store_x(a, acc, res, t, s_x, s_st, vtmp):
    st1(a, res, s_x, 0); st1(a, res+4, s_x, KB)
    a(f"v_add_f32 v{t}, v{acc}, v{acc+1}\nv_mul_f32 v{t+1}, v{acc}, v{acc}\nv_add_f32 v{t+2}, v{acc+2}, v{acc+3}\nv_mul_f32 v{t+3}, v{acc+1}, v{acc+1}")
    a(f"v_fmac_f32 v{t+1}, v{acc+2}, v{acc+2}\nv_fmac_f32 v{t+3}, v{acc+3}, v{acc+3}")
    for i in range(4, 16, 2):
        a(f"v_add_f32 v{t}, v{t}, v{acc+i}\nv_fmac_f32 v{t+1}, v{acc+i}, v{acc+i}\nv_add_f32 v{t+2}, v{t+2}, v{acc+i+1}\nv_fmac_f32 v{t+3}, v{acc+i+1}, v{acc+i+1}")
    a(f"v_add_f32 v{t}, v{t}, v{t+2}\nv_add_f32 v{t+1}, v{t+1}, v{t+3}\nv_lshlrev_b32 v{vtmp}, 3, v1")
    a(f"v_mov_b32 v{t+2}, v{t}\nv_mov_b32 v{t+3}, v{t+1}\ns_nop 1")
    a(f"v_permlane32_swap_b32 v{t+2}, v{t}\nv_permlane32_swap_b32 v{t+3}, v{t+1}\ns_nop 1")
    a(f"v_add_f32 v{t}, v{t}, v{t+2}\nv_add_f32 v{t+1}, v{t+1}, v{t+3}\ns_mov_b32 exec_hi, 0")
    a.v(f"buffer_store_dwordx2 {vr(t,2)}, v{vtmp}, {srd(WS)}, s{s_st} offen", 'st')
    a("s_mov_b32 exec_hi, -1")
def store_out(a, res, s_out, vtmp):
    a(f"v_mul_u32_u24 v{vtmp}, 896, v1\nv_lshl_add_u32 v{vtmp}, v2, 4, v{vtmp}")
    a(f"v_permlane32_swap_b32 v{res}, v{res+2}\nv_permlane32_swap_b32 v{res+1}, v{res+3}")
    a(f"v_permlane32_swap_b32 v{res+4}, v{res+6}\nv_permlane32_swap_b32 v{res+5}, v{res+7}")
    a.v(f"buffer_store_dwordx4 {vr(res,4)}, v{vtmp}, {srd(SRD_A)}, s{s_out} offen{SO}")
    a.v(f"buffer_store_dwordx4 {vr(res+4,4)}, v{vtmp}, {srd(SRD_A)}, s{s_out} offen offset:32{SO}")

def publish(a, tag='st'):
    slow, done = a.label('Lps'), a.label('Lpd')
    if tag: a.wait(tag)
    a(f"v_mov_b32 v14, s{S_TAG}\nv_mov_b32 v15, 0\ns_cmp_lg_u32 s{S_MODE}, 0\ns_cbranch_scc1 {slow}\ns_mov_b64 exec, 1")
    a.v(f"buffer_store_dword v14, v15, {srd(WS)}, s{S_FO} offen", 'flag')
    a(f"s_branch {done}\n{slow}:\ns_waitcnt vmcnt(0)\nbuffer_wbl2 sc1\ns_waitcnt vmcnt(0)\ns_mov_b64 exec, 1")
    a(f"buffer_store_dword v14, v15, {srd(WS)}, s{S_FO} offen sc1\n{done}:\ns_mov_b64 exec, -1")
SPIN_MAX = 1 << 20
def await_(a):
    L, X, F = a.label('Lw'), a.label('Lwx'), a.label('Lwf')
    a(f"s_mov_b64 exec, s[{S_MASK}:{S_MASK+1}]\n{L}:\ns_add_u32 s{S_SPIN}, s{S_SPIN}, 1\ns_cmp_gt_u32 s{S_SPIN}, {SPIN_MAX}\ns_cbranch_scc1 {X}")
    a(f"buffer_load_dword v14, v13, {srd(WS)}, s{S_FB} offen sc1\ns_waitcnt vmcnt(0)")
    a(f"v_subrev_u32 v14, s{S_TAG}, v14\nv_cmp_lt_u32 vcc, 15, v14\ns_cbranch_vccnz {L}")
    a(f"{X}:\ns_mov_b64 exec, -1\ns_cmp_eq_u32 s{S_MODE}, 0\ns_cbranch_scc1 {F}\nbuffer_inv sc1\ns_waitcnt vmcnt(0)\n{F}:")
    a.vm = []
def check_issue(a, base=None):
    a.v(f"buffer_load_dword v12, v13, {srd(WS)}, s{S_FB} offen sc1", 'chk')
def check_done(a):
    ok = a.label('Lck')
    a.wait('chk')
    a(f"v_subrev_u32 v12, s{S_TAG}, v12\nv_cmp_lt_u32 vcc, 15, v12\ns_and_b64 vcc, vcc, s[{S_MASK}:{S_MASK+1}]\ns_or_b32 s30, vcc_lo, vcc_hi\ns_or_b32 s30, s30, s{S_MODE}\ns_cbranch_scc0 {ok}")
    vm = list(a.vm); await_(a); a.vm = vm
    a(f"{ok}:")
def pk_add(a, d, s_, n):
    for r in range(0, n, 2): a(f"v_pk_add_f32 {vr(d+r,2)}, {vr(d+r,2)}, {vr(s_+r,2)}")
def next_tag(a): a(f"s_add_u32 s{S_TAG}, s{S_TAG}, 1")
def poll_global(a, base, nreg, tagoff, hook=None, sbase=None):
    L, X = a.label('Lg'), a.label('Lgx')
    a(f"v_lshlrev_b32 v12, 2, v0\ns_add_u32 s30, s{S_B}, {tagoff}")
    a(f"{L}:\ns_add_u32 s{S_SPIN}, s{S_SPIN}, 1\ns_cmp_gt_u32 s{S_SPIN}, {SPIN_MAX}\ns_cbranch_scc1 {X}\ns_mov_b32 s31, {base if sbase is None else 's%d' % sbase}")
    for i in range(nreg):
        if i: a("s_add_u32 s31, s31, 4096")
        a(f"buffer_load_dword v{8+i}, v12, {srd(WS)}, s31 offen sc1")
    a("s_waitcnt vmcnt(0)")
    for i in range(nreg): a(f"v_subrev_u32 v{8+i}, s30, v{8+i}")
    if hook: hook(L)
    if nreg == 4: a("v_max3_u32 v14, v8, v9, v10\nv_max_u32 v14, v14, v11")
    a(f"v_cmp_lt_u32 vcc, 15, v{14 if nreg == 4 else 8}\ns_cbranch_vccnz {L}\n{X}:")
    a.vm = []
def publish_global(a, soff, tagoff):
    a(f"s_add_u32 s30, s{S_B}, {tagoff}\nv_mov_b32 v14, s30\nv_mov_b32 v15, 0\ns_mov_b64 exec, 1")
    a.v(f"buffer_store_dword v14, v15, {srd(WS)}, s{soff} offen sc1", 'flag')
    a("s_mov_b64 exec, -1")

STAMPS = WS_END
NST = 20
STAMP_ON = [False]
TM = "s_memtime" if "c" in OPT else "s_memrealtime"
def stamp(a, i, l=None, grp='t'):
    if STAMP_ON[0] != grp: return
    if l is None: a(f"{TM} s[{60+2*i}:{61+2*i}]"); return
    sk = a.label('Lst')
    a(f"s_cmp_lg_u32 s{S_L}, {l}\ns_cbranch_scc1 {sk}\n{TM} s[{60+2*i}:{61+2*i}]\n{sk}:")
def stamp_head(a):
    if STAMP_ON[0]:
        for i in range(2*NST): a(f"s_mov_b32 s{60+i}, 0")
        a(f"{TM} s[60:61]\ns_mov_b32 s58, s2")
def stamp_tail(a):
    if not STAMP_ON[0]: return
    a(f"s_waitcnt vmcnt(0) lgkmcnt(0)\n{TM} s[{60+2*NST-2}:{60+2*NST-1}]\ns_waitcnt lgkmcnt(0)\ns_mov_b64 exec, 1")
    if 'd' in OPT:
        a(f"s_lshl_b32 s58, s58, 2\ns_add_u32 s58, s58, s{S_W}\ns_cmp_lg_u32 s58, 0\ns_cbranch_scc1 Lnodbg\ns_load_dwordx2 s[24:25], s[0:1], 80\nv_mov_b32 v1, 0\ns_waitcnt lgkmcnt(0)")
        for n, i in enumerate((1, 2, 3, 4, 5, 7, 8, 9, 10, 11, 12, 14, 15, 16, 17, 19)):
            a(f"s_sub_u32 s58, s{60+2*i}, s60\nv_mov_b32 v2, s58\nglobal_store_dword v1, v2, s[24:25] offset:{4*n}")
        a("Lnodbg:")
        return
    a(f"s_lshl_b32 s58, s58, 2\ns_add_u32 s58, s58, s{S_W}\ns_mul_i32 s58, s58, {NST*4}\ns_add_u32 s58, s58, {STAMPS}\nv_mov_b32 v1, s58")
    for i in range(NST): a(f"v_mov_b32 v2, s{60+2*i}\nglobal_store_dword v1, v2, s[{WS}:{WS+1}] offset:{4*i}")
```

```python
from p_common import *
from p_att import dma7, wd, wq_pre, G1, G2, G3
X = 116
EB = 5 if 'E' not in OPT else 6
LC = 1
TE = 4
HS = 31 if 'H' in OPT else 3
SLOT = [56*KB, 84*KB, 112*KB, 0, 28*KB, 56*KB, 84*KB]
def gu_epi(acc, C, T, MU, RS, NL):
    o = []
    for r in range(16): o.append(f"v_fma_f32 v{acc+r}, -v{MU}, v{C+r}, v{acc+r}")
    B = lambda r: [f"v_mul_f32 v{acc+r}, v{NL}, v{acc+r}"] if r < 8 else []
    o += B(0) + B(1)
    for r in range(12):
        if r < 8: o.append(f"v_exp_f32 v{acc+r}, v{acc+r}")
        o += B(r+2)
        if 1 <= r < 9: o.append(f"v_fma_f32 v{acc+r-1}, v{acc+r-1}, v{RS}, v{RS}")
        if 2 <= r < 10: o.append(f"v_rcp_f32 v{acc+r-2}, v{acc+r-2}")
        if 3 <= r < 11: o.append(f"v_mul_f32 v{acc+8+r-3}, v{acc+r-3}, v{acc+8+r-3}")
        if r >= 5 and r % 2: o.append(f"v_cvt_pk_bf16_f32 v{T+(r-5)//2}, v{acc+8+r-5}, v{acc+8+r-4}")
    return o
def wkv_loads(a):
    sk = a.label('Lnw')
    a(f"s_or_b32 s30, s{S_Q}, s{S_L}\ns_cbranch_scc1 {sk}\ns_mul_i32 s30, s{S_W}, {14*KB}\ns_add_u32 s30, s30, {WKF}")
    for i in range(14):
        if i and i % 4 == 0: a("s_add_u32 s30, s30, 4096")
        a(f"buffer_load_dwordx4 {R(256+224+4*i if i < 8 else 232+4*(i-8), 4)}, v0, {srd(WS)}, s30 offen offset:{(i%4)*KB}")
    a(f"{sk}:")
RING, DEP, N0, NE = 100, 16, 5, 4*TE
ko = [7*j + t for j in range(4) for t in range(TE)] + [7*j + t for j in range(4) for t in range(TE, 7)]
def ld_h(a, i, ti):
    t0 = 0 if ko[i] % 7 < TE else TE
    if ko[i] % 7 == t0: a(f"s_add_u32 s{28+ti}, s{24+ti}, {ko[i]*KB}")
    ld1(a, RING + 8*(i % DEP) + 4*ti, 28+ti, (ko[i] % 7 - t0)*KB, (i, ti), 0, SL)
def down_setup(a):
    a(f"s_lshl_b32 s24, s{S_W}, 4\ns_lshl_b32 s25, s{S_DTP}, 1\ns_add_u32 s24, s24, s25\ns_mov_b32 s{S_MASK}, 0x3333\ns_mov_b32 s{S_MASK+1}, 0")
    a(f"s_lshl_b64 s[{S_MASK}:{S_MASK+1}], s[{S_MASK}:{S_MASK+1}], s24\ns_add_u32 s44, s{S_GTB}, s25")
    a(f"s_lshr_b32 s45, s{S_W}, 1\ns_add_u32 s45, s45, s44\ns_and_b32 s46, s{S_W}, 1\ns_lshl_b32 s47, s{S_DFP}, 1\ns_add_u32 s46, s46, s47")
    a(f"s_mul_i32 s47, s45, {28*KB}\ns_lshl_b32 s48, s46, 11\ns_add_u32 s47, s47, s48\ns_add_u32 s49, s47, {XB}")
    a(f"s_mul_i32 s24, s44, {112*KB}\ns_mul_i32 s25, s{S_W}, {28*KB}\ns_add_u32 s24, s24, s25\ns_add_u32 s24, s24, {HO}\ns_add_u32 s25, s24, {112*KB}")
    a(f"s_bitcmp1_b32 s{S_W}, 1\ns_cselect_b32 s26, s25, s24\ns_cselect_b32 s25, s24, s25\ns_mov_b32 s24, s26")
def gu(a):
    ACC, A, C, T, D, X0 = 16, 256+224, 80, 96, 7, 8
    MU, RS, NL = 6, 7, 9
    a(f"s_lshl_b32 s24, s{S_W}, 4\ns_mov_b32 s{S_MASK}, 0x3fff\ns_mov_b32 s{S_MASK+1}, 0\ns_lshl_b64 s[{S_MASK}:{S_MASK+1}], s[{S_MASK}:{S_MASK+1}], s24")
    a(f"s_add_u32 s27, s{S_GTB}, s{S_W}\ns_mul_i32 s24, s27, {28*KB}\ns_add_u32 s24, s24, {XB}")
    a(f"s_mul_i32 s25, s27, {14*256}\ns_add_u32 s25, s25, {SB}")
    a(f"s_mul_i32 s27, s27, {112*KB}\ns_mul_i32 s26, s{S_JJ}, {7*KB}\ns_add_u32 s27, s27, s26\ns_add_u32 s27, s27, {HO}")
    a(f"v_add_u32 v3, 0x10000, v0\nv_add_u32 v4, 0x20000, v0\nv_lshlrev_b32 v5, 4, v2\nv_add_u32 v5, 0x20000, v5")
    a(f"v_mul_u32_u24 v8, {7*256}, v2\nv_lshl_add_u32 v8, v1, 3, v8")
    seq = [(t, k) for k in range(28) for t in range(2)] + [(t, k) for t in range(2, 7) for k in range(28)]
    N = len(seq)
    ds = []
    def rd(n):
        t, k = seq[n]
        off = SLOT[t] + k*KB
        a(f"ds_read_b128 {R(A+4*(n%8),4)}, v{(0, 3, 4)[off >> 16]} offset:{off % 65536}"); ds.append(n)
    def dswait(tag):
        i = max(j for j, x in enumerate(ds) if x == tag)
        a(f"s_waitcnt lgkmcnt({min(15, len(ds)-1-i)})")
    for n in range(D): rd(n)
    for f in dma7(a, 3, SLOT[3], ('T', 3)): f()
    await_(a); next_tag(a)
    stamp(a, 8, 0); stamp(a, 16, 1); stamp(a, 1, 0, 'f')
    def xl(i): return lambda: ldn(a, X, 1, 24, lambda j: ('x', j), SL, i)
    def sl(i): return lambda: a.v(f"buffer_load_dwordx2 {vr(100+2*i,2)}, v8, {srd(WS)}, s25 offen offset:{i*256}{SL}", 'stat')
    for i in range(X0): xl(i)()
    at = {n: [] for n in range(N)}
    for i in range(X0, 28): at[2*(i-X0)].append(xl(i))
    for i in range(7): at[2*i+1].append(sl(i))
    for i, f in enumerate(dma7(a, 4, SLOT[4], ('T', 4))): at[57+3*i].append(f)
    for i, f in enumerate(dma7(a, 5, SLOT[5], ('T', 5)) + dma7(a, 6, SLOT[6], ('T', 6))): at[78+3*i].append(f)
    def epi(t):
        o = [('cs', t)] if t else []
        e = gu_epi(ACC + 16*(t % 4), C, T, MU, RS, NL)
        return [('csw', t)] + e[:16] + ([('cs', t+1)] if t < 6 else []) + e[16:] + [('st', t)]
    def emit(x):
        if isinstance(x, str): a(x); return 2 if x.startswith(('v_exp', 'v_rcp')) else 1
        if x[0] == 'cs':
            for q in range(4): a(f"ds_read_b128 {vr(C+4*q,4)}, v5 offset:{L_CS - 131072 + x[1]*128 + 32*q}"); ds.append(x)
            return 4
        if x[0] == 'csw': dswait(('cs', x[1])); return 1
        st1(a, T, 27, 0, ('h', x[1])); a("s_add_u32 s27, s27, 1024"); mid[0] = (mid[1] + 10 if x[1] == TE-1 else mid[0]); return 2
    def cost(x): return (2 if x.startswith(('v_exp', 'v_rcp')) else 1) if isinstance(x, str) else {'cs': 4, 'csw': 1, 'st': 2}[x[0]]
    todo = []; mid = [-1, 0]
    for n, (t, k) in enumerate(seq):
        if t == 0: a.wait(('x', k))
        if n % 2 == 0: dswait(min(n+1, N-1))
        acc = ACC + 16*(t % 4)
        a(f"{MF} {vr(acc,16)}, {R(A+4*(n%8),4)}, {R(X+4*k,4)}, {vr(acc,16) if k else 0}")
        if k == 27 and t >= 1: stamp(a, 2+t, 0, 'f')
        if n + D < N: rd(n + D)
        n0 = len(a.lines)
        for f in at[n]:
            if not ('X' in OPT and n > 56): f()
        used = len(a.lines) - n0 + (LC if len(a.lines) > n0 else 0)
        if n == 56: a("s_barrier")
        if n in (100, 132) and 'X' in OPT: a('s_barrier')
        elif n in (100, 132, 158): a.wait(('T', {100: 4, 132: 5, 158: 6}[n])); a("s_barrier")
        mid[1] = n
        if n == 161: down_setup(a); check_issue(a); used += 4
        if n == 171:
            a(f"s_sub_u32 s{S_TAG}, s{S_TAG}, 1"); check_done(a); next_tag(a); used += 4
        if n in (172, 174): ldn(a, 64, 1, 49, 'res', SL, (n-172)//2); used += 2
        if n >= 176 and n % 2 == 0: ld_h(a, (n-176)//4, (n//2) % 2); used += 2
        if n == mid[0]: publish(a, ('h', TE-1)); next_tag(a); used += 4
        if n == 40: emit(('cs', 0))
        if n == 44:
            a.wait('stat'); todo = fin_stats_list(100, MU, RS, 10) + [f"v_mul_f32 v{NL}, {fhex(-LOG2E)}, v{RS}", f"v_rcp_f32 v{RS}, v{RS}"]
        if n == 58: todo += epi(0) + epi(1)
        if k == 3 and t > 2: todo += epi(t-1)
        budget = EB - used - (n % 2 == 1) + (t >= 5 and len(todo) > 2.6*(28-k))
        while todo and budget >= cost(todo[0]): budget -= emit(todo.pop(0))
        if n == 171: assert not any(x == ('st', 3) for x in todo)
        if t >= 3 and k == 27: assert not any(x == ('st', t-3) for x in todo), t
    a("s_nop 10")
    print('epilogue items left', len(todo))
    for x in todo: emit(x)
    stamp(a, 2, 0, 'f')
    for x in epi(6)[:-1]: emit(x)
    stamp(a, 18, 0, 'f')
    emit(('st', 6))
    stamp(a, 9, 0, 'f')
    assert 0 < mid[0] < 171, mid
def down(a, pro1_label, end):
    ACC, RES = 16, 80
    skip, last, wb = a.label('Lskip'), a.label('Llast'), a.label('Lwb')
    publish(a, ('h', 6))
    a(f"s_add_u32 s30, s{S_TAG}, 1\ns_cmp_ge_u32 s{S_JJ}, 14\ns_cselect_b32 s{S_TAG}, s30, s{S_TAG}\ns_cbranch_scc1 {skip}")
    nxt = N0
    stamp(a, 9, 0); stamp(a, 10, 0, 'f'); stamp(a, 10, 0); stamp(a, 17, 1); stamp(a, 11, 0, 'f')
    init_resid(a, ACC, 64)
    for k in range(28):
        for ti in range(2):
            a.wait((k, ti))
            for fi in range(2):
                acc = ACC + 16*(2*ti+fi)
                a(f"{MF} {vr(acc,16)}, {R(256+8*ko[k]+4*fi,4)}, {vr(RING+8*(k%DEP)+4*ti,4)}, {vr(acc,16) if k or acc == ACC else 0}")
            if ti == 0 and k + N0 == NE - 3: check_issue(a)
            if ti == 0 and k + N0 == NE: check_done(a); next_tag(a)
            if k + N0 < 28: ld_h(a, k + N0, ti)
        if k == 27: wkv_loads(a)
        if k in (0, 9, 18, 27): stamp(a, 12 + k//9, 0, 'f')
        if k == 20:
            for m in range(4): a(f"s_xor_b32 s30, s{S_W}, {m}\ns_mul_i32 s30, s30, {12*KB}\nv_add_u32 v{5+m}, s30, v0")
    a("s_nop 5")
    for m in range(1, 4):
        if m == 3: a("s_nop 3")
        for q in range(4): a(f"ds_write_b128 v{5+m}, {vr(ACC+16*m+4*q,4)} offset:{(4*(m-1)+q)*KB}")
    def l0_only(i0, i1):
        sk = a.label('Lnq')
        a(f"s_cmp_lg_u32 s{S_L}, 0\ns_cbranch_scc1 {sk}"); vm = list(a.vm); wq_pre(a, i0, i1); a.vm = vm; a(f"{sk}:")
    l0_only(0, G1)
    a("s_waitcnt lgkmcnt(0)\ns_barrier")
    for j in range(12): a(f"ds_read_b128 {vr(ACC+16+4*j,4)}, v5 offset:{j*KB}")
    l0_only(G1, G2)
    a(f"s_add_u32 s24, s47, {XA}\ns_mul_i32 s25, s45, {14*256}\ns_lshl_b32 s48, s46, 8\ns_add_u32 s25, s25, s48\ns_add_u32 s25, s25, {SA}")
    for w in range(1, 4):
        a(f"s_waitcnt lgkmcnt({12-4*w})")
        pk_add(a, ACC, ACC+16*w, 16)
    pack(a, ACC, RES)
    a(f"s_cmp_lg_u32 s{S_L}, 0\ns_cbranch_scc1 {last}")
    stamp(a, 16, 0, 'f')
    store_x(a, ACC, RES, 32, 24, 25, 5)
    wq_pre(a, G2, G3)
    publish(a)
    stamp(a, 11); stamp(a, 17, 0, 'f')
    nx = a.label('Lnx')
    a(f"s_barrier\ns_branch {nx}\n{skip}:\ns_cmp_lg_u32 s{S_L}, 0\ns_cbranch_scc1 {wb}")
    wq_pre(a, 0, G3)
    a(f"{nx}:")
    a(f"s_mov_b32 s{S_L}, 1\ns_add_u32 s{S_LB}, s{S_LB}, {LSTR}\ns_branch {pro1_label}")
    a(f"{last}:\ns_mul_i32 s24, s45, {32*896}\ns_lshl_b32 s25, s46, 6\ns_add_u32 s24, s24, s25")
    store_out(a, RES, 24, 5)
    a(f"s_branch {end}\n{wb}:")
    if 'W' in OPT:
        a(f"s_cmp_lg_u32 s{S_W}, 0\ns_cbranch_scc1 {end}\ns_sub_u32 s{S_TAG}, s{S_TAG}, 1\ns_mov_b64 s[{S_MASK}:{S_MASK+1}], -1")
        await_(a)
        a("buffer_wbl2 sc1\ns_waitcnt vmcnt(0)")
    a(f"s_branch {end}")
```

```python
from p_common import *
def load_srd(a, off, nb, s=SRD_A):
    a(f"s_load_dwordx2 s[{s}:{s+1}], s[0:1], {off}\ns_mov_b32 s{s+2}, {nb}\ns_mov_b32 s{s+3}, 0x20000")
def xhalf(a, v, t):
    a(f"v_mov_b32 v{t}, v{v}\ns_nop 1\nv_permlane32_swap_b32 v{t}, v{v}\ns_nop 1\nv_add_f32 v{v}, v{v}, v{t}")
def tr_addr(a, v, rowb, sbase):
    a(f"v_bfe_u32 v8, v1, 2, 2\nv_lshl_add_u32 v8, v2, 2, v8\nv_mul_u32_u24 v{v}, {rowb}, v8\nv_lshrrev_b32 v8, 4, v1\nv_lshl_add_u32 v{v}, v8, 5, v{v}")
    a(f"v_and_b32 v8, 3, v1\nv_lshl_add_u32 v{v}, v8, 3, v{v}\nv_add_u32 v{v}, s{sbase}, v{v}")
PK = 16
def unit(a, rowb, offs, dsts, v_dst, cs=None, zero_odd=False):
    n = len(offs)
    a(f"v_lshrrev_b32 v4, 6, v0\nv_mul_u32_u24 v4, {rowb}, v4\nv_and_b32 v8, 48, v0\nv_add_u32 v4, v4, v8\ns_lshl_b32 s47, s{S_W}, 14\ns_waitcnt lgkmcnt(0)")
    for i in range(n):
        a(f"s_add_u32 s46, s44, {offs[i]}\ns_add_u32 m0, s47, {i*KB}\ns_nop 0")
        a.v(f"buffer_load_dwordx4 v4, {srd(SRD_A)}, s46 offen lds", i)
    tr_addr(a, 9, 64, 47)
    if cs: a("v_mov_b32 v10, 0\nv_mov_b32 v11, 0\nv_mov_b32 v12, 0x3f803f80")
    for i in range(n + 1):
        if i < n:
            a.wait(i)
            if i in (0, n-1): stamp(a, 2 + (i > 0), None, 'p')
            a(f"ds_read_b64_tr_b16 {vr(PK+4*i,2)}, v9 offset:{i*KB}\nds_read_b64_tr_b16 {vr(PK+4*i+2,2)}, v9 offset:{i*KB+512}")
        if i:
            j = i - 1
            a(f"s_add_u32 s46, s45, {dsts[j]}\ns_waitcnt lgkmcnt({2 if i < n else 0})")
            if zero_odd and j & 1: a(f"s_mov_b32 exec_lo, 0\nv_mov_b32 v{PK+4*j+2}, 0\nv_mov_b32 v{PK+4*j+3}, 0\ns_mov_b32 exec_lo, -1")
            st1(a, PK+4*j, 46, 0, 'st', v_dst, SC)
            if cs:
                for d in range(4): a(f"v_dot2c_f32_bf16 v{10+(d&1)}, v{PK+4*j+d}, v12")
    stamp(a, 4, None, 'p')
    if cs:
        a("s_nop 2\nv_add_f32 v10, v10, v11"); xhalf(a, 10, 11)
        a(f"s_lshl_b32 s30, s{S_W}, 7\nv_lshl_add_u32 v11, v1, 2, s30\nv_add_u32 v11, {L_MISC}, v11\nds_write_b32 v11, v10\ns_waitcnt lgkmcnt(0)\ns_barrier")
        a(f"v_lshlrev_b32 v11, 2, v1\nv_add_u32 v11, {L_MISC}, v11\nds_read2_b32 v[8:9], v11 offset1:32\nds_read2_b32 v[10:11], v11 offset0:64 offset1:96")
        a("s_waitcnt lgkmcnt(0)\nv_add_f32 v8, v8, v9\nv_add_f32 v10, v10, v11\nv_add_f32 v10, v10, v8")
        skip = a.label('Lcs')
        a(f"s_cmp_lg_u32 s{S_W}, 0\ns_cbranch_scc1 {skip}\ns_mov_b32 exec_hi, 0")
        a(f"buffer_store_dword v10, v{cs}, {srd(WS)}, s48 offen sc1\ns_mov_b32 exec_hi, -1\n{skip}:")
XK, AK, AV = 16, 48, 64
def kv_core(a, wkv, s_dst):
    a("v_mul_f32 v8, v6, v7\nv_sub_f32 v8, 0, v8")
    for i in range(7):
        for d in range(4):
            r = XK + 4*i + d
            a(f"v_lshlrev_b32 v9, 16, v{r}\nv_and_b32 v10, 0xffff0000, v{r}\nv_fma_f32 v9, v9, v7, v8\nv_fma_f32 v10, v10, v7, v8\nv_cvt_pk_bf16_f32 v{r}, v9, v10")
        a("s_nop 1")
        a(f"{MF} {vr(AK,16)}, {R(wkv(i),4)}, {vr(XK+4*i,4)}, {vr(AK,16) if i else 0}")
        a(f"{MF} {vr(AV,16)}, {vr(XK+4*i,4)}, {R(wkv(7+i),4)}, {vr(AV,16) if i else 0}")
    a(f"s_lshl_b32 s30, s{S_W}, 13\ns_add_u32 s30, s30, {L_GU}\nv_add_u32 v8, s30, v0\ns_lshl_b32 s30, s{S_W}, 11\ns_add_u32 s30, s30, {L_GU}\nv_add_u32 v9, s30, v0")
    a(f"v_mov_b32 v10, 1.0\nv_cmp_eq_u32 vcc, 28, v1\ns_cmp_ge_u32 s{S_W}, 2\ns_cselect_b32 s30, 0, 1.0\nv_mov_b32 v11, s30\nv_cndmask_b32 v10, v11, v10, vcc")
    a(f"s_cselect_b32 s44, 0xf0000000, 0\ns_mov_b32 s45, s44\ns_mov_b32 s46, s44\ns_cmp_eq_u32 s{S_W}, 1\ns_cselect_b32 s47, -1, s44\ns_nop 4")
    for q in range(8): a(f"ds_write_b128 v8, {vr(AK+4*q,4)} offset:{q*KB}")
    a("s_waitcnt lgkmcnt(0)\ns_barrier")
    for w in range(4):
        for q in range(2): a(f"ds_read_b128 {vr(16+8*w+4*q,4)}, v9 offset:{w*8*KB+q*KB}")
    for w in range(1, 4):
        a(f"s_waitcnt lgkmcnt({6-2*w})")
        for r in range(8): a(f"v_add_f32 v{16+r}, v{16+r}, v{16+8*w+r}")
    for r in range(8): a(f"v_cndmask_b32 v{16+r}, v{16+r}, v10, s[{44+2*(r>>2)}:{45+2*(r>>2)}]")
    for i in range(4): a(f"v_cvt_pk_bf16_f32 v{24+i}, v{16+2*i}, v{17+2*i}")
    st1(a, 24, s_dst, 0, 'st', 0, SC)
def w_dma(a):
    def seq(order):
        for m, s in order:
            for i in range(7):
                if i % 4 == 0: a(f"s_add_u32 s46, s45, {i*KB}\ns_add_u32 m0, s47, {(7*m+i)*KB}\ns_nop 0")
                a.v(f"buffer_load_dwordx4 v0, {srd(s)}, s46 offen offset:{(i%4)*KB} lds", 'w')
    o = list(enumerate((SRD_B, SRD_KV)))
    if 'M' not in OPT: return seq(o)
    alt, j = a.label('Lwa'), a.label('Lwj')
    a(f"s_bitcmp1_b32 s2, 3\ns_cbranch_scc1 {alt}")
    vm = list(a.vm); seq(o); a.vm = vm
    a(f"s_branch {j}\n{alt}:"); seq(o[::-1]); a(f"{j}:")
def w_read(a):
    W = 132
    for i in range(14):
        o = (i // 7)*7*KB + (i % 7)*896
        a(f"ds_read_b64_tr_b16 {vr(W+4*i,2)}, v5 offset:{o}\nds_read_b64_tr_b16 {vr(W+4*i+2,2)}, v5 offset:{o+448}")
    return W
def prep(a, done):
    Lup, Lq, Lo, Ld, Lx, Lk = [a.label('Lprep') for _ in range(6)]
    for lim, lab in ((192, Lx), (191, Lk), (142, Ld), (128, Lo), (112, Lq), (56, Lup)):
        a(f"s_cmp_ge_u32 s2, {lim}\ns_cbranch_scc1 {lab}")
    vm0 = list(a.vm)
    Lgu = a.label('Lprep')
    load_srd(a, 48, 448*3584); a(f"s_mov_b32 s49, s2\ns_mov_b32 s50, 0\ns_branch {Lgu}\n{Lup}:")
    load_srd(a, 56, 448*3584); a(f"s_sub_u32 s49, s2, 56\ns_mov_b32 s50, 64\n{Lgu}:")
    a("s_and_b32 s44, s49, 7\ns_mul_i32 s44, s44, 7\ns_lshr_b32 s49, s49, 3\ns_add_u32 s49, s49, s44")
    a(f"s_mul_i32 s44, s{S_W}, {7*16*3584}\ns_lshl_b32 s45, s49, 6\ns_add_u32 s44, s44, s45")
    a(f"s_mul_i32 s45, s49, {2*28*KB}\ns_mul_i32 s46, s{S_W}, {7*KB}\ns_add_u32 s45, s45, s46\ns_add_u32 s45, s45, {WGU}")
    a(f"v_lshrrev_b32 v6, 4, v1\nv_and_b32 v7, 15, v1\nv_mul_u32_u24 v5, {28*KB}, v6\nv_lshl_add_u32 v5, v2, 9, v5\nv_lshl_add_u32 v5, v7, 4, v5")
    a(f"v_lshlrev_b32 v6, 7, v6\nv_lshl_add_u32 v6, v7, 2, v6\nv_add_u32 v6, s50, v6\ns_lshl_b32 s50, s50, 2\nv_add_u32 v5, s50, v5")
    a(f"s_lshl_b32 s48, s49, 8\ns_add_u32 s48, s48, {CS + 16*128}")
    unit(a, 3584, [16*3584*i for i in range(7)], [KB*i for i in range(7)], 5, 6); a(f"s_branch {done}")
    a.vm = list(vm0)
    a(f"{Lq}:\ns_and_b32 s49, s2, 7\ns_lshl_b32 s49, s49, 1\ns_bfe_u32 s44, s2, 0x10003\ns_add_u32 s49, s49, s44"); load_srd(a, 8, 448*896)
    a(f"s_mul_i32 s44, s{S_W}, {7*16*896}\ns_mul_i32 s45, s49, 56\ns_add_u32 s44, s44, s45")
    a(f"s_mul_i32 s45, s49, {28*KB}\ns_mul_i32 s46, s{S_W}, {7*KB}\ns_add_u32 s45, s45, s46\ns_add_u32 s45, s45, {WQF}")
    a(f"v_lshlrev_b32 v6, 2, v1\ns_lshl_b32 s48, s49, 7\ns_add_u32 s48, s48, {CS}")
    unit(a, 896, [16*896*i for i in range(7)], [KB*i for i in range(7)], 0, 6); a(f"s_branch {done}")
    a.vm = list(vm0)
    a(f"{Lo}:\ns_and_b32 s49, s2, 7\ns_lshl_b32 s49, s49, 1\ns_bfe_u32 s44, s2, 0x10003\ns_add_u32 s49, s49, s44"); load_srd(a, 32, 448*896)
    a("s_lshr_b32 s45, s49, 1\ns_add_u32 s45, s45, 6\ns_cmp_ge_u32 s49, 12\ns_cselect_b32 s49, s45, s49")
    a(f"s_mul_i32 s44, s{S_W}, {4*28*896}\ns_lshl_b32 s45, s49, 6\ns_add_u32 s44, s44, s45")
    a(f"s_lshl_b32 s45, s49, 15\ns_lshl_b32 s46, s{S_W}, 13\ns_add_u32 s45, s45, s46\ns_add_u32 s45, s45, {WOF}")
    unit(a, 896, [(28*(i >> 1) + 16*(i & 1))*896 for i in range(8)], [i*KB for i in range(8)], 0, None, True)
    a(f"s_branch {done}")
    a.vm = list(vm0)
    a(f"{Ld}:\ns_sub_u32 s49, s2, 142"); load_srd(a, 64, 1792*896)
    a(f"s_lshl_b32 s49, s49, 2\ns_add_u32 s49, s49, s{S_W}\ns_lshr_b32 s50, s49, 1\ns_mul_i32 s50, s50, 9363\ns_lshr_b32 s50, s50, 16\ns_mul_i32 s51, s50, 14\ns_sub_u32 s51, s49, s51")
    a(f"s_mul_i32 s44, s50, {8*16*896}\ns_lshl_b32 s45, s51, 6\ns_add_u32 s44, s44, s45")
    a(f"s_mul_i32 s45, s51, {112*KB}\ns_lshl_b32 s46, s50, 13\ns_add_u32 s45, s45, s46\ns_add_u32 s45, s45, {WDF}")
    unit(a, 896, [16*896*i for i in range(8)], [KB*i for i in range(8)], 0); a(f"s_branch {done}")
    a.vm = list(vm0)
    a(f"{Lk}:"); load_srd(a, 16, 448*56, SRD_B); load_srd(a, 24, 448*56, SRD_KV)
    a(f"s_mul_i32 s45, s{S_W}, {7*896}\ns_mul_i32 s47, s{S_W}, {14*KB}\ns_waitcnt lgkmcnt(0)")
    w_dma(a); tr_addr(a, 5, 56, 47); a.wait0()
    W = w_read(a)
    a(f"s_add_u32 s44, s47, {WKF}\ns_waitcnt lgkmcnt(0)")
    for i in range(14):
        if i and i % 4 == 0: a("s_add_u32 s44, s44, 4096")
        st1(a, W+4*i, 44, (i % 4)*KB, 'st', 0, SC)
    a(f"s_branch {done}")
    a.vm = list(vm0)
    a(f"{Lx}:\ns_sub_u32 s49, s2, 192"); load_srd(a, 0, 2048*896); load_srd(a, 16, 448*56, SRD_B); load_srd(a, 24, 448*56, SRD_KV)
    a(f"v_mul_u32_u24 v4, 896, v1\nv_lshl_add_u32 v4, v2, 4, v4\ns_mul_i32 s44, s49, {32*896}\ns_mul_i32 s45, s{S_W}, 224\ns_add_u32 s44, s44, s45")
    a(f"s_mul_i32 s45, s{S_W}, {7*896}\ns_mul_i32 s47, s{S_W}, {14*KB}\ns_waitcnt lgkmcnt(0)")
    if 'K' in OPT: w_dma(a)
    for i in range(7): ld1(a, XK+4*i, 44, 32*i, 'x', 4, '', SRD_A)
    if 'K' not in OPT: w_dma(a)
    tr_addr(a, 5, 56, 47)
    a(f"s_mul_i32 s44, s49, {28*KB}\ns_mul_i32 s45, s{S_W}, {7*KB}\ns_add_u32 s44, s44, s45\ns_add_u32 s44, s44, {XA}")
    a("v_mov_b32 v6, 0\nv_mov_b32 v7, 0\nv_mov_b32 v12, 0x3f803f80")
    a.wait('x'); stamp(a, 5, None, 'p')
    if 'L' in OPT: a.wait('w'); stamp(a, 2, None, 'p')
    for i in range(7):
        r = XK + 4*i
        a(f"v_permlane32_swap_b32 v{r}, v{r+2}\nv_permlane32_swap_b32 v{r+1}, v{r+3}")
        if i == 4: a("s_add_u32 s44, s44, 4096")
        a("s_nop 0")
        st1(a, r, 44, (i % 4)*KB, 'st', 0, SC)
        for d in range(4): a(f"v_dot2c_f32_bf16 v6, v{r+d}, v12\nv_dot2c_f32_bf16 v7, v{r+d}, v{r+d}")
    a("s_nop 2"); xhalf(a, 6, 8); xhalf(a, 7, 8)
    a(f"s_lshl_b32 s30, s{S_W}, 8\nv_lshl_add_u32 v9, v1, 3, s30\nv_add_u32 v9, {L_MISC}, v9\ns_mov_b32 exec_hi, 0\nds_write_b64 v9, v[6:7]\ns_mov_b32 exec_hi, -1")
    a(f"s_mul_i32 s44, s49, {14*256}\ns_lshl_b32 s45, s{S_W}, 10\ns_add_u32 s44, s44, s45\ns_add_u32 s44, s44, {SA}")
    a("v_lshrrev_b32 v8, 1, v0\nv_mov_b32 v10, 0\nv_mov_b32 v11, 0\ns_mov_b32 exec_lo, 0\nv_mov_b32 v6, 0\nv_mov_b32 v7, 0\ns_mov_b32 exec_lo, -1")
    a.wait('w'); stamp(a, 6, None, 'p')
    W = w_read(a)
    a.v(f"buffer_store_dwordx2 v[6:7], v8, {srd(WS)}, s44 offen sc1")
    sk = a.label('Lsz')
    a(f"s_cmp_eq_u32 s{S_W}, 3\ns_cbranch_scc1 {sk}\nbuffer_store_dwordx2 v[10:11], v8, {srd(WS)}, s44 offen offset:512 sc1\n{sk}:")
    a(f"s_waitcnt lgkmcnt(0)\ns_barrier\nv_lshlrev_b32 v9, 3, v1\nv_add_u32 v9, {L_MISC}, v9")
    for w in range(4): a(f"ds_read_b64 {vr(100+2*w,2)}, v9 offset:{256*w}")
    a(f"s_waitcnt lgkmcnt(0)\nv_add_f32 v100, v100, v102\nv_add_f32 v101, v101, v103\nv_add_f32 v104, v104, v106\nv_add_f32 v105, v105, v107")
    a("v_add_f32 v6, v100, v104\nv_add_f32 v7, v101, v105")
    for i in stats_tail(6, 7): a(i)
    a(f"s_lshl_b32 s48, s49, 12\ns_lshl_b32 s45, s{S_W}, 10\ns_add_u32 s48, s48, s45\ns_add_u32 s48, s48, {KVO}")
    stamp(a, 7, None, 'p')
    kv_core(a, lambda i: W + 4*i, 48)
    stamp(a, 8, None, 'p')
```

```python
import sys
from p_common import *
import p_prep, p_att, p_ffn
NAME = 'interleave_layers__grouped_kv_mqa__glu_gated_glu__prompt_kernel'
def roles(a, force_slow):
    a("s_mov_b32 s25, 0")
    for x in range(8):
        for i in range(4): a(f"v_cmp_eq_u32 s[{44+2*i}:{45+2*i}], {x}, v{8+i}")
        a("s_nop 0")
        for i in range(4): a(f"s_bcnt1_i32_b64 s{44+2*i}, s[{44+2*i}:{45+2*i}]")
        a("s_add_u32 s44, s44, s46\ns_add_u32 s48, s48, s50\ns_add_u32 s44, s44, s48\ns_xor_b32 s44, s44, 32\ns_or_b32 s25, s25, s44")
    a("v_lshrrev_b32 v12, 4, v0")
    for i in range(4):
        a(f"v_cmp_eq_u32 s[{44+2*i}:{45+2*i}], s57, v{8+i}\nv_cmp_gt_u32 vcc, s2, v12\nv_add_u32 v12, 64, v12\ns_nop 0\ns_and_b64 vcc, vcc, s[{44+2*i}:{45+2*i}]\ns_bcnt1_i32_b64 s{44+2*i}, vcc")
    a("s_add_u32 s44, s44, s46\ns_add_u32 s48, s48, s50\ns_add_u32 s44, s44, s48\ns_lshl_b32 s44, s44, 3\ns_or_b32 s44, s44, s57\ns_or_b32 s24, s2, 0x100")
    if force_slow: a("s_mov_b32 s25, 1")
    a("s_cmp_eq_u32 s25, 0\ns_cselect_b32 s24, s44, s24")
def kernel(force_slow=False):
    a = A2()
    end, fin, pdone, again, retry, p1, l0 = [a.label(x) for x in ('Lend', 'Lfin', 'Lpdone', 'Lagain', 'Lretry', 'Lpro', 'Lfirst')]
    a(f"s_cmp_ge_u32 s2, 256\ns_cbranch_scc1 {fin}")
    stamp_head(a)
    a(f"s_load_dwordx2 s[{WS}:{WS+1}], s[0:1], 88\nv_lshrrev_b32 v1, 6, v0\nv_and_b32 v13, 63, v0\ns_getreg_b32 s57, hwreg(HW_REG_XCC_ID, 0, 4)")
    a(f"v_readfirstlane_b32 s{S_W}, v1\nv_and_b32 v1, 31, v13\nv_lshrrev_b32 v2, 5, v13\nv_lshlrev_b32 v0, 4, v13\nv_lshlrev_b32 v13, 2, v13")
    a(f"s_mov_b32 s{WS+2}, {WS_END}\ns_mov_b32 s{WS+3}, 0x20000\ns_mov_b32 s{S_SPIN}, 0\ns_mov_b32 s{S_L}, 0\ns_mov_b32 s{S_LB}, 0")
    a(f"s_getpc_b64 s[24:25]\nLpc:\ns_lshr_b32 s26, s2, 3\ns_lshl_b32 s26, s26, 2\ns_add_u32 s26, s26, s{S_W}\ns_lshl_b32 s26, s26, 10")
    a(f"v_add_u32 v8, s26, v0\nv_min_u32 v8, Lcode_end-Lpc-16, v8\nv_mov_b32 v9, s25\nv_add_co_u32 v8, vcc, s24, v8\nv_addc_co_u32 v9, vcc, 0, v9, vcc")
    a.v("global_load_dwordx4 v[244:247], v[8:9], off")
    a(f"s_waitcnt lgkmcnt(0)\ns_load_dword s56, s[{WS}:{WS+1}], {EPOCH}" if EPOCH < (1 << 20) else
      f"s_waitcnt lgkmcnt(0)\ns_mov_b32 s26, {EPOCH}\ns_load_dword s56, s[{WS}:{WS+1}], s26")
    p_prep.prep(a, pdone)
    a(f"{pdone}:"); load_out = p_prep.load_srd
    load_out(a, 72, 2048*896)
    a.wait0(); a("s_waitcnt lgkmcnt(0)")
    stamp(a, 1); stamp(a, 1, None, 'p')
    a(f"s_mul_i32 s{S_B}, s56, 0x9E3779B1\ns_add_u32 s{S_B}, s{S_B}, 0x5bd1e900\ns_andn2_b32 s{S_B}, s{S_B}, 0xff\ns_add_u32 s{S_TAG}, s{S_B}, 1\ns_barrier")
    w123, nepo, w0 = a.label('Lw'), a.label('Lne'), a.label('Lw')
    a(f"s_cmp_lg_u32 s{S_W}, 0\ns_cbranch_scc1 {w123}\ns_lshl_b32 s24, s2, 6\ns_add_u32 s24, s24, {GF1}\ns_add_u32 s{S_B}, s{S_B}, s57")
    publish_global(a, 24, 0x80)
    a(f"s_sub_u32 s{S_B}, s{S_B}, s57")
    def warm(L):
        sk = a.label('Lwm')
        a(f"v_cmp_lt_u32 vcc, 15, v9\ns_or_b32 s24, vcc_hi, s55\ns_lshr_b32 s24, s24, 16\ns_cbranch_scc1 {sk}")
        a(f"s_mov_b32 s55, -1\ns_lshr_b32 s24, s2, 3\ns_mul_i32 s24, s24, {14*KB}\ns_add_u32 s24, s24, {WQF}\nv_lshlrev_b32 v15, 3, v0\ns_mov_b32 exec_hi, 0xffffff")
        a(f"buffer_load_dword v240, v15, {srd(WS)}, s24 offen\ns_add_u32 s24, s24, {7*KB}\nbuffer_load_dword v241, v15, {srd(WS)}, s24 offen\ns_mov_b32 exec_hi, -1\n{sk}:")
    a("s_cmp_ge_u32 s2, 192\ns_cselect_b32 s55, -1, 0")
    poll_global(a, GF1, 4, 0x80, warm if 'Q' in OPT else None)
    stamp(a, 9, None, 'p')
    roles(a, force_slow)
    a(f"v_mov_b32 v8, s24\nv_mov_b32 v9, {L_MISC+1024}\nds_write_b32 v9, v8\ns_cmp_lg_u32 s2, 0\ns_cbranch_scc1 {nepo}")
    a(f"s_add_u32 s56, s56, 1\nv_mov_b32 v14, s56\nv_mov_b32 v15, 0\ns_mov_b32 s25, {EPOCH}\ns_mov_b64 exec, 1\nbuffer_store_dword v14, v15, {srd(WS)}, s25 offen sc1\ns_mov_b64 exec, -1")
    a(f"{nepo}:\ns_waitcnt lgkmcnt(0)\ns_branch {w0}\n{w123}:")
    a(f"{w0}:\ns_barrier\nv_mov_b32 v9, {L_MISC+1024}\nds_read_b32 v8, v9\ns_waitcnt lgkmcnt(0)\nv_readfirstlane_b32 s24, v8\ns_nop 3")
    a(f"s_lshr_b32 s{S_MODE}, s24, 8\ns_and_b32 s25, s24, 7\ns_bfe_u32 s26, s24, 0x50003")
    a(f"s_lshr_b32 s{S_TB}, s26, 2\ns_lshl_b32 s27, s25, 3\ns_add_u32 s{S_TB}, s{S_TB}, s27\ns_and_b32 s{S_Q}, s26, 3\ns_and_b32 s{S_JJ}, s26, 15")
    a(f"s_and_b32 s{S_GTB}, s{S_TB}, 0x3c\ns_lshl_b32 s{S_FB}, s{S_GTB}, 6\ns_add_u32 s{S_FB}, s{S_FB}, {FL}")
    a(f"s_lshl_b32 s{S_FO}, s{S_JJ}, 2\ns_add_u32 s{S_FO}, s{S_FO}, s{S_W}\ns_lshl_b32 s{S_FO}, s{S_FO}, 2\ns_add_u32 s{S_FO}, s{S_FO}, s{S_FB}")
    a(f"s_cmp_ge_u32 s{S_JJ}, 7\ns_cselect_b32 s{S_DTP}, 1, 0\ns_cselect_b32 s27, 7, 0\ns_sub_u32 s{S_DFP}, s{S_JJ}, s27\ns_min_u32 s{S_DFP}, s{S_DFP}, 6")
    stamp(a, 2); stamp(a, 10, None, 'p')
    p_att.pro0(a)
    stamp(a, 3); stamp(a, 13, None, 'p')
    a("s_mov_b32 s29, 0")
    p_att.main_loop(a, p_att.att_prefetch(a, True), True)
    stamp(a, 4)
    a(f"s_branch {l0}\n{p1}:")
    a.vm = []
    p_att.pro1(a)
    a(f"s_mov_b32 s29, 0\n{again}:")
    p_att.main_loop(a, p_att.att_prefetch(a, False), False)
    stamp(a, 15)
    a(f"{l0}:")
    p_att.finish(a, retry)
    publish(a)
    stamp(a, 5, 0)
    p_att.oproj(a)
    p_ffn.gu(a)
    p_ffn.down(a, p1, end)
    a(f"{retry}:\ns_waitcnt vmcnt(0)")
    p_att.max_pass(a)
    p_att.kv_first(a)
    a(f"s_mov_b32 s29, 1\ns_branch {again}\n{end}:")
    stamp_tail(a)
    a(f"{fin}:\ns_endpgm\nLcode_end:")
    return a.text()
if __name__ == '__main__':
    out = sys.argv[1]; opts = sys.argv[2] if len(sys.argv) > 2 else ''
    STAMP_ON[0] = 't' if 't' in opts else ('f' if 'f' in opts else ('p' if 'p' in opts else False))
    s = build_file([(NAME, kernel('s' in opts), 256, 256, 102)], [(NAME, 256, 256, LDS_SIZE)], single=True)
    open(out, 'w').write(s); assemble(out, NAME); print(len(s))
```

```python
from p_common import *
from p_prep import kv_core, XK
Q, S, P, O, KVR, RES = 16, 48, 80, 96, 160, 224
def wo_reg(i):
    return 256+224+4*i if i < 8 else 232+4*(i-8) if i < 14 else KVR+4*(i-14) if i < 30 else P+8+4*(i-30)
WQR = [16+4*i for i in range(8)] + [64+4*i for i in range(8)] + [136+4*i for i in range(6)]
CU = -1 if 'C' in OPT else 50
NT = ' nt' if 'N' in OPT else ''
def kv_ld(a, b, isv):
    if isv == 0: a(f"s_mov_b32 s26, {b*4096}")
    else: a(f"s_mov_b32 s27, {b*4096}")
    for i in range(2):
        a.v(f"buffer_load_dwordx4 {R(KVR+16*(b&3)+8*isv+4*i,4)}, v0, {srd(SRD_KV)}, s{26+isv} offen offset:{(2*isv+i)*KB}", ('kv', b, isv))
def kv_srd(a):
    a(f"s_lshl_b32 s24, s{S_W}, 16\ns_add_u32 s24, s24, s{S_LB}\ns_add_u32 s24, s24, {KVO}\ns_add_u32 s{SRD_KV}, s{WS}, s24\ns_addc_u32 s{SRD_KV+1}, s{WS+1}, 0")
    a(f"s_mov_b32 s{SRD_KV+2}, 65536\ns_mov_b32 s{SRD_KV+3}, 0x20000")
def kv_first(a):
    for b in range(4):
        kv_ld(a, b, 0)
        if b < 3: kv_ld(a, b, 1)
def qk(a, h, slot, sb, half):
    a(f"{MF} {vr(S+16*sb,16)}, {R(KVR+16*slot+4*half,4)}, {vr(Q+8*h+4*half,4)}, {vr(S+16*sb,16) if half else 0}")
def pv(a, h, slot, pb, half, first=False):
    a(f"{MF} {R(O+16*h,16)}, {R(KVR+16*slot+8+4*half,4)}, {vr(P+8*pb+4*half,4)}, {0 if first and not half else R(O+16*h,16)}")
def dma7(a, t, slot, tag):
    def f(i):
        def g():
            if i % 4 == 0: a(f"s_add_u32 m0, s45, {slot + i*KB}\ns_add_u32 s46, s44, {t*28*KB + i*KB}")
            a.v(f"buffer_load_dwordx4 v0, {srd(WS)}, s46 offen offset:{(i%4)*KB}{NT} lds", tag)
        return g
    return [f(i) for i in range(7)]
def wd(a, k, fi):
    def g():
        if k % 4 == 0: a("s_add_u32 s53, s52, s55" if fi else f"s_add_u32 s52, s54, {k*KB}")
        ld1(a, 256 + 8*k + 4*fi, 52+fi, (k % 4)*KB, 'wd', 0, NT)
    return g
def att_prefetch(a, first):
    a(f"s_mul_i32 s45, s{S_W}, {7*KB}\ns_mul_i32 s44, s{S_JJ}, {7*28*KB}\ns_add_u32 s44, s44, s45\ns_add_u32 s44, s44, {WGU}")
    a(f"s_lshl_b32 s47, s{S_Q}, 2\ns_add_u32 s47, s47, s{S_W}\ns_min_u32 s47, s47, 13\ns_lshl_b32 s48, s47, 15\ns_add_u32 s48, s48, {WOF}")
    a(f"s_mul_i32 s50, s{S_TB}, {28*KB}\ns_lshl_b32 s51, s47, 11\ns_add_u32 s50, s50, s51\ns_add_u32 s50, s50, {XA}")
    a(f"s_mul_i32 s51, s{S_JJ}, {7*128}\ns_add_u32 s51, s51, {CS+16*128}")
    def wo(i):
        def g():
            if i % 4 == 0 or i == 14: a(f"s_add_u32 s49, s48, {(i & ~3)*KB}")
            ld1(a, wo_reg(i), 49, (i % 4)*KB, 'wo')
        return g
    def cs():
        a(f"s_mov_b32 m0, {L_CS}\ns_nop 0"); a.v(f"buffer_load_dwordx4 v0, {srd(WS)}, s51 offen lds", 'cs')
    a.late = [wo(i) for i in range(14, 32)]
    pf = [wo(i) for i in range(14)] + [lambda i=i: ld1(a, RES+4*i, 50, i*KB, 'res', 0, SL) for i in range(2)] + [cs]
    for t in range(3): pf += dma7(a, t, L_GU + t*28*KB, ('T', t))
    if first:
        a(f"s_mul_i32 s54, s{S_DFP}, {224*KB}\ns_mul_i32 s52, s{S_W}, {28*KB}\ns_add_u32 s54, s54, s52\ns_add_u32 s54, s54, {WDF}")
        a(f"s_bitcmp1_b32 s{S_W}, 0\ns_cselect_b32 s52, {112*KB}, 0\ns_lshl_b32 s55, s52, 1\ns_sub_u32 s55, {112*KB}, s55\ns_add_u32 s54, s54, s52")
        a(f"s_add_u32 s24, s{S_GTB}, s{S_W}\ns_lshl_b32 s24, s24, 4\ns_add_u32 s24, s24, s{S_JJ}\ns_mul_i32 s24, s24, {7*KB}\ns_add_u32 s24, s24, {HO}")
        a(f"s_add_u32 s16, s{WS}, s24\ns_addc_u32 s17, s{WS+1}, 0")
        pf += [wd(a, k, fi) for k in range(28) for fi in range(2)]
    return pf
def main_loop(a, pf, first):
    a.wait(('kv', 0, 0))
    qk(a, 0, 0, 0, 0); qk(a, 0, 0, 0, 1)
    a("s_nop 10")
    pf = list(pf)
    for u in range(64):
        kb, h = u >> 2, u & 3
        sr_, pb = S + 16*(u & 1), P + 8*(u & 1)
        for q in range(4):
            if q == 0 and h == 3 and kb < 15: a.wait(('kv', kb+1, 0))
            if q == 2 and h == 1: a.wait(('kv', kb, 1))
            if q < 2:
                if u < 63: qk(a, (u+1) & 3, ((u+1) >> 2) & 3, (u+1) & 1, q)
            elif u: pv(a, (u-1) & 3, ((u-1) >> 2) & 3, (u-1) & 1, q-2, u <= 4)
            n0 = len(a.lines)
            if q == 1 and h == 3 and kb + 4 < 16: kv_ld(a, kb+4, 0)
            if q == 2 and h == 1 and kb + 3 < 16: kv_ld(a, kb+3, 1)
            if (q == 3 or (q == 0 and u % 2 == 0 and first)) and pf: pf.pop(0)()
            if u > 50 and u % 2 and q in (1, 2): a.late.pop(0)()
            if u == CU and q == 2 and first:
                a(f"s_getpc_b64 s[24:25]\nLpc2:\ns_and_b32 s30, s{S_TB}, 7\ns_lshl_b32 s30, s30, 2\ns_add_u32 s30, s30, s{S_Q}\ns_lshl_b32 s30, s30, 2\ns_add_u32 s30, s30, s{S_W}\ns_lshl_b32 s30, s30, 10")
                a(f"v_add_u32 v8, s30, v0\nv_min_u32 v8, Lcode_end-Lpc2-16, v8\nv_mov_b32 v9, s25\nv_add_co_u32 v8, vcc, s24, v8\nv_addc_co_u32 v9, vcc, 0, v9, vcc")
                a.v("global_load_dword v12, v[8:9], off")
            if u == 50 and q == 1 and first:
                a("v_lshlrev_b32 v10, 3, v0\ns_mov_b32 exec_hi, 0\ns_mov_b32 exec_lo, 0xfffffff")
                a.v("global_load_dword v12, v10, s[16:17] offset:3584"); a("s_mov_b64 exec, -1")
            if u < 56 and q == 1 and u % 2 == 0 and first: a(f"s_load_dwordx2 s[18:19], s[16:17], {64*u+60}")
            for e in range(4): a(f"v_exp_f32 v{sr_+4*q+e}, v{sr_+4*q+e}")
            cv = [] if q == 0 else [2*(q-1), 2*(q-1)+1] + ([6, 7] if q == 3 else [])
            for c in cv: a(f"v_cvt_pk_bf16_f32 v{pb+c}, v{sr_+2*c}, v{sr_+2*c+1}")
    assert not pf
    a("s_nop 0")
    pv(a, 3, 3, 1, 0); pv(a, 3, 3, 1, 1)
    a.after = a.late
def rot(a, i, shift, mul, v, base=0):
    a(f"s_add_u32 s30, s{S_W}, {i}\ns_and_b32 s30, s30, 3\ns_mul_i32 s30, s30, {mul}\nv_add_u32 v{v}, s30, v{base}")
def max_pass(a):
    for h in range(4): a(f"v_mov_b32 v{P+h}, 0xff800000")
    a("s_mov_b32 s26, 0\ns_mov_b32 s28, 16")
    L = a.label('Lmax')
    a(f"{L}:")
    for i in range(2): a(f"buffer_load_dwordx4 {R(KVR+4*i,4)}, v0, {srd(SRD_KV)}, s26 offen offset:{i*KB}")
    a("s_add_u32 s26, s26, 4096\ns_waitcnt vmcnt(0)")
    for h in range(4):
        qk(a, h, 0, 0, 0); qk(a, h, 0, 0, 1); a("s_nop 12")
        for r in range(8): a(f"v_max3_f32 v{P+h}, v{S+2*r}, v{S+2*r+1}, v{P+h}")
    a(f"s_sub_u32 s28, s28, 1\ns_cmp_lg_u32 s28, 0\ns_cbranch_scc1 {L}")
    a(f"s_lshl_b32 s24, s{S_W}, 8\nv_add_u32 v6, s24, v13\nv_lshlrev_b32 v7, 2, v1")
    for h in range(4): rot(a, h, 0, KB, 5, 6); a(f"ds_write_b32 v5, v{P+h} offset:{L_Q}")
    a("s_waitcnt lgkmcnt(0)\ns_barrier")
    for h in range(4):
        rot(a, h, 0, KB, 5, 7)
        for i in range(8): a(f"ds_read_b32 v{S+i}, v5 offset:{L_Q+128*i}")
        a("s_waitcnt lgkmcnt(0)")
        for i in (1, 3, 5): a(f"v_max3_f32 v{S}, v{S+i}, v{S+i+1}, v{S}")
        a(f"v_max_f32 v{S}, v{S}, v{S+7}\nv_sub_f32 v8, 0, v{S}")
        a("v_and_b32 v9, 0xffff0000, v8\nv_sub_f32 v8, v8, v9\nv_and_b32 v10, 0xffff0000, v8\nv_sub_f32 v8, v8, v10")
        a(f"v_lshrrev_b32 v9, 16, v9\ns_mov_b32 exec_lo, 0\nv_or_b32 v{Q+8*h+6}, v9, v10\nv_lshrrev_b32 v{Q+8*h+7}, 16, v8\ns_mov_b32 exec_lo, -1")
    a("s_barrier")
def finish(a, retry):
    for i in range(1, 4): rot(a, i, 0, 12*KB, 4+i)
    rot(a, 0, 0, 12*KB, 8)
    for f in a.after: f()
    for i in range(1, 4):
        if i == 3: a("s_nop 7")
        for q in range(4): a(f"ds_write_b128 v{4+i}, {R(O+16*i+4*q,4)} offset:{(4*(i-1)+q)*KB}")
    a("s_waitcnt lgkmcnt(0)\ns_barrier")
    for j in range(12): a(f"ds_read_b128 {vr(O+16+4*j,4)}, v8 offset:{j*KB}")
    a(f"s_mul_i32 s24, s{S_TB}, {OSTR}\ns_lshl_b32 s25, s{S_Q}, 13\ns_add_u32 s24, s24, s25\ns_lshl_b32 s25, s{S_W}, 11\ns_add_u32 s24, s24, s25")
    a(f"s_add_u32 s24, s24, {OO}")
    for w in range(1, 4):
        a(f"s_waitcnt lgkmcnt({12-4*w})")
        pk_add(a, O+12, O+16*w+12, 4); pk_add(a, O, O+16*w, 12)
        if w == 3: a(f"v_mov_b32 v6, v{O+12}\nv_mov_b32 v5, v{O+12}\nv_mov_b32 v8, 0\nv_mov_b32 v9, 0x21800000")
    a("v_permlane32_swap_b32 v6, v5\nv_mov_b32 v10, 0x5d800000\ns_nop 0\nv_rcp_f32 v7, v5")
    a(f"v_cmp_nge_f32 vcc, v5, v9\nv_cmp_nle_f32 s[30:31], v5, v10")
    for r in range(16): a(f"v_mul_f32 v{O+r}, v{O+r}, v7\nv_fmac_f32 v8, 0, v{O+r}")
    a(f"s_or_b64 s[30:31], s[30:31], vcc\nv_cmp_u_f32 vcc, v8, v8")
    for i in range(8): a(f"v_cvt_pk_bf16_f32 v{P+i}, v{O+2*i}, v{O+2*i+1}")
    a(f"s_or_b64 s[30:31], s[30:31], vcc\ns_mov_b32 exec_lo, 0\nv_mov_b32 v{P+6}, 0\nv_mov_b32 v{P+7}, 0\ns_mov_b32 exec_lo, -1")
    st1(a, P, 24, 0); st1(a, P+4, 24, KB)
    a(f"s_cmp_lg_u64 s[30:31], 0\ns_cselect_b32 s30, 1, 0\ns_andn2_b32 s30, s30, s29\nv_mov_b32 v7, s30\ns_lshl_b32 s30, s{S_W}, 2\ns_add_u32 s30, s30, {L_MISC}\nv_mov_b32 v8, s30")
    a(f"ds_write_b32 v8, v7\ns_waitcnt lgkmcnt(0)\ns_barrier\nv_mov_b32 v8, {L_MISC}\nds_read_b128 v[8:11], v8")
    a(f"s_waitcnt lgkmcnt(0)\nv_or3_b32 v8, v8, v9, v10\nv_or_b32 v8, v8, v11\ns_nop 0\nv_readfirstlane_b32 s30, v8\ns_nop 3\ns_cmp_lg_u32 s30, 0\ns_cbranch_scc1 {retry}")
def x_loads(a):
    a(f"s_mul_i32 s25, s{S_W}, {7*KB}\ns_mul_i32 s24, s{S_TB}, {28*KB}\ns_add_u32 s24, s24, s25\ns_add_u32 s24, s24, {XA}")
    dman(a, 7, 24, 25, 'x', SL)
    a(f"s_mul_i32 s24, s{S_TB}, {14*256}\ns_add_u32 s24, s24, {SA}")
    ld_stats(a, 100, 24, 8, 'stat')
W0 = 10
def wq1(a, i):
    if i and i % 4 == 0: a("s_add_u32 s29, s29, 4096")
    ld1(a, WQR[i % 22], 29, (i % 4)*KB, ('wq', i))
def wq_loads(a):
    a(f"s_lshl_b32 s25, s{S_Q}, 2\ns_add_u32 s25, s25, s{S_W}\ns_lshl_b32 s28, s25, 7\ns_add_u32 s28, s28, {CS}")
    a(f"s_mul_i32 s29, s25, {28*KB}\ns_add_u32 s29, s29, {WQF}")
    for i in range(W0): wq1(a, i)
WQ1 = [132] + [136+4*i for i in range(22)] + [88, 92, 96, 80, 84]
G1, G2, G3, G4 = (5, 9, 17, 22) if 'G' not in OPT else (4, 8, 14, 18)
IP = 8 if 'I' in OPT else 0 if 'J' not in OPT else 4
def wq_pre(a, i0, i1):
    if i0 == 0:
        a(f"s_lshl_b32 s29, s{S_Q}, 2\ns_add_u32 s29, s29, s{S_W}\ns_lshl_b32 s28, s29, 7\ns_add_u32 s28, s28, {CS}")
        a(f"s_mul_i32 s29, s29, {28*KB}\ns_add_u32 s29, s29, {WQF}")
    for i in range(i0, i1):
        if i and i % 4 == 0: a("s_add_u32 s29, s29, 4096")
        ld1(a, WQ1[i], 29, (i % 4)*KB, ('wq', i))
def q_proj(a, extra=(), before_barrier=None, pre=None):
    B = 224
    if not pre: extra = [lambda i=i: wq1(a, i) for i in range(W0, 28)] + [lambda: ld_cs(a, 116, 28, 9, 'qcs')] + list(extra)
    for i in range(8): a(f"ds_read_b128 {vr(B+4*i,4)}, v0 offset:{i*KB}")
    a(f"v_mul_f32 v7, {fhex(QSCALE)}, v7")
    for i in range(28):
        if pre and i != G4: a(f"s_waitcnt lgkmcnt({min(7, 27-i)})")
        elif pre: a(f"s_waitcnt vmcnt(1) lgkmcnt({min(7, 27-i)})")
        else: a.wait(('wq', i), f" lgkmcnt({min(7, 27-i)})")
        a(f"{MF} {vr(S,16)}, {R(WQ1[i] if pre else WQR[i % 22],4)}, {vr(B+4*(i%8),4)}, {vr(S,16) if i else 0}")
        if pre and i == IP: pre()
        if i + 8 < 28: a(f"ds_read_b128 {vr(B+4*(i%8),4)}, v0 offset:{(i+8)*KB}")
        if extra: extra.pop(0)()
    while extra: extra.pop(0)()
    stamp(a, 12, 0, 'p')
    rot(a, 0, 0, 2*KB, 5)
    for i in range(1, 4): rot(a, i, 0, 2*KB, 132+i)
    if not pre: a.wait('qcs')
    for r in range(16): a(f"v_fma_f32 v{S+r}, -v6, v{116+r}, v{S+r}\nv_mul_f32 v{S+r}, v7, v{S+r}")
    for i in range(8): a(f"v_cvt_pk_bf16_f32 v{P+i}, v{S+2*i}, v{S+2*i+1}")
    a(f"s_mov_b32 exec_lo, 0\nv_mov_b32 v{P+6}, 0\nv_mov_b32 v{P+7}, 0\ns_mov_b32 exec_lo, -1")
    a(f"ds_write_b128 v5, {vr(P,4)} offset:{L_Q}\nds_write_b128 v5, {vr(P+4,4)} offset:{L_Q+KB}")
    if before_barrier: before_barrier()
    a("s_waitcnt lgkmcnt(0)\ns_barrier")
    for i in range(4):
        for j in range(2): a(f"ds_read_b128 {vr(Q+8*i+4*j,4)}, v{132+i if i else 5} offset:{L_Q+j*KB}")
def pro0(a):
    x_loads(a); wq_loads(a); kv_srd(a)
    a.wait('stat'); stamp(a, 11, None, 'p'); a("s_barrier")
    fin_stats(a, 100, 6, 7, 8)
    q_proj(a, [lambda b=b, v=v: kv_ld(a, b, v) for b in range(4) for v in range(2) if 2*b+v < 7])
    a("s_waitcnt lgkmcnt(0)")
def pro1(a):
    a(f"s_lshr_b32 s24, s{S_JJ}, 3\ns_mul_i32 s24, s24, 28\ns_bfe_u32 s25, s{S_JJ}, 0x10002\ns_lshl_b32 s25, s25, 1\ns_add_u32 s24, s24, s25")
    a(f"s_mov_b32 s{S_MASK}, 0x3333333\ns_mov_b32 s{S_MASK+1}, 0\ns_lshl_b64 s[{S_MASK}:{S_MASK+1}], s[{S_MASK}:{S_MASK+1}], s24")
    wq_pre(a, G3, G4)
    await_(a); next_tag(a)
    stamp(a, 12)
    x_loads(a); kv_srd(a)
    nokv, kv, qp, dm = a.label('Lnokv'), a.label('Lkv'), a.label('Lqp'), a.label('Ldm')
    a(f"s_cmp_eq_u32 s{S_Q}, 0\ns_cbranch_scc1 {kv}")
    vm = list(a.vm)
    wq_pre(a, G4, 28); ld_cs(a, 116, 28, 9, 'qcs')
    a.wait('stat'); fin_stats(a, 100, 6, 7, 8)
    a(f"s_barrier\ns_branch {qp}\n{kv}:")
    a.vm = vm
    a.wait('stat'); fin_stats(a, 100, 6, 7, 8)
    a(f"s_mul_i32 s24, s{S_W}, {7*KB}\nv_add_u32 v8, s24, v0")
    for i in range(7): a(f"ds_read_b128 {vr(XK+4*i,4)}, v8 offset:{i*KB}")
    a(f"s_lshl_b32 s48, s{S_TB}, 12\ns_lshl_b32 s24, s{S_W}, 10\ns_add_u32 s48, s48, s24\ns_add_u32 s48, s48, s{S_LB}\ns_add_u32 s48, s48, {KVO}\ns_waitcnt lgkmcnt(0)")
    kv_core(a, lambda i: 256+224+4*i if i < 8 else 232+4*(i-8), 48)
    wq_pre(a, G4, 28); ld_cs(a, 116, 28, 9, 'qcs')
    nst = a.n_after('st')
    a(f"{qp}:")
    def pub():
        a(f"s_cmp_lg_u32 s{S_Q}, 0\ns_cbranch_scc1 {dm}")
        a(f"s_waitcnt vmcnt({nst})\ns_barrier\ns_cmp_lg_u32 s{S_W}, 0\ns_cbranch_scc1 {dm}\ns_lshl_b32 s24, s{S_TB}, 6\ns_add_u32 s24, s24, {GF2}")
        publish_global(a, 24, 0x40)
        stamp(a, 13)
        a(f"s_branch {nokv}\n{dm}:\nbuffer_load_dword v11, v13, {srd(WS)}, s28 offen\n{nokv}:")
    def poll():
        sk = a.label('Lnp')
        a(f"s_cmp_lg_u32 s{S_W}, 0\ns_cbranch_scc1 {sk}")
        poll_global(a, GF2, 1, 0x40)
        a(f"{sk}:")
    if 'A' in OPT: q_proj(a, [], poll, pub)
    else:
        q_proj(a, [], None, pub)
        a(f"s_lshl_b32 s24, s{S_W}, 10\ns_add_u32 s24, s24, {GF2}\ns_mov_b64 exec, 0xffff")
        poll_global(a, None, 1, 0x40, None, 24)
        a("s_mov_b64 exec, -1")
    kv_first(a)
    a("s_waitcnt lgkmcnt(0)")
    stamp(a, 14)
def oproj(a):
    a(f"s_lshr_b32 s24, s{S_JJ}, 2\ns_lshl_b32 s24, s24, 4\ns_mov_b32 s{S_MASK}, 0xffff\ns_mov_b32 s{S_MASK+1}, 0\ns_lshl_b64 s[{S_MASK}:{S_MASK+1}], s[{S_MASK}:{S_MASK+1}], s24")
    a(f"s_lshl_b32 s25, s{S_W}, 13\ns_mul_i32 s24, s{S_TB}, {OSTR}\ns_add_u32 s24, s24, s25\ns_add_u32 s24, s24, {OO}")
    await_(a); next_tag(a)
    stamp(a, 6, 0)
    dman(a, 8, 24, 25, 'o', SL)
    a(f"s_mul_i32 s24, s{S_TB}, {14*256}\ns_lshl_b32 s25, s47, 8\ns_add_u32 s25, s25, s24\ns_add_u32 s25, s25, {SB}\ns_add_u32 s24, s50, {XB-XA}")
    init_resid(a, 16, RES)
    a.wait0(); a("s_barrier")
    idle, join = a.label('Lidle'), a.label('Ljoin')
    a(f"s_lshl_b32 s30, s{S_Q}, 2\ns_add_u32 s30, s30, s{S_W}\ns_cmp_ge_u32 s30, 14\ns_cbranch_scc1 {idle}")
    B, A = 48, 16
    for i in range(8): a(f"ds_read_b128 {vr(B+4*i,4)}, v0 offset:{i*KB}")
    for i in range(32):
        a(f"s_waitcnt lgkmcnt({min(7, 31-i)})")
        a(f"{MF} {vr(A,16)}, {R(wo_reg(i),4)}, {vr(B+4*(i%8),4)}, {vr(A,16)}")
        if i + 8 < 32: a(f"ds_read_b128 {vr(B+4*(i%8),4)}, v0 offset:{(i+8)*KB}")
    a("s_barrier\ns_nop 10")
    pack(a, A, RES)
    store_x(a, A, RES, 32, 24, 25, 5)
    publish(a)
    a(f"s_branch {join}\n{idle}:\ns_barrier\n{join}:")
    stamp(a, 7, 0)
```

```python
from p_common import *
from p_att import dma7, wd, wq_pre, G1, G2, G3
X = 116
EB = 5 if 'E' not in OPT else 6
LC = 1
TE = 4
HS = 31 if 'H' in OPT else 3
SLOT = [56*KB, 84*KB, 112*KB, 0, 28*KB, 56*KB, 84*KB]
def gu_epi(acc, C, T, MU, RS, NL):
    o = []
    for r in range(16): o.append(f"v_fma_f32 v{acc+r}, -v{MU}, v{C+r}, v{acc+r}")
    B = lambda r: [f"v_mul_f32 v{acc+r}, v{NL}, v{acc+r}"] if r < 8 else []
    o += B(0) + B(1)
    for r in range(12):
        if r < 8: o.append(f"v_exp_f32 v{acc+r}, v{acc+r}")
        o += B(r+2)
        if 1 <= r < 9: o.append(f"v_fma_f32 v{acc+r-1}, v{acc+r-1}, v{RS}, v{RS}")
        if 2 <= r < 10: o.append(f"v_rcp_f32 v{acc+r-2}, v{acc+r-2}")
        if 3 <= r < 11: o.append(f"v_mul_f32 v{acc+8+r-3}, v{acc+r-3}, v{acc+8+r-3}")
        if r >= 5 and r % 2: o.append(f"v_cvt_pk_bf16_f32 v{T+(r-5)//2}, v{acc+8+r-5}, v{acc+8+r-4}")
    return o
def wkv_loads(a):
    sk = a.label('Lnw')
    a(f"s_or_b32 s30, s{S_Q}, s{S_L}\ns_cbranch_scc1 {sk}\ns_mul_i32 s30, s{S_W}, {14*KB}\ns_add_u32 s30, s30, {WKF}")
    for i in range(14):
        if i and i % 4 == 0: a("s_add_u32 s30, s30, 4096")
        a(f"buffer_load_dwordx4 {R(256+224+4*i if i < 8 else 232+4*(i-8), 4)}, v0, {srd(WS)}, s30 offen offset:{(i%4)*KB}")
    a(f"{sk}:")
RING, DEP, N0, NE = 100, 16, (8 if 'V' in OPT else 10 if 'Y' in OPT else 5), 4*TE
PD, CI, PB = 4, (3 if 'U' not in OPT else 2), (0 if 'P' not in OPT else 2)
ko = [7*j + t for r in (range(TE), range(TE, 6), [6]) for j in range(4) for t in r]
def ld_h(a, i, ti):
    t0 = 0 if ko[i] % 7 < TE else TE if ko[i] % 7 < 6 else 6
    if ko[i] % 7 == t0: a(f"s_add_u32 s{28+ti}, s{24+ti}, {ko[i]*KB}")
    ld1(a, RING + 8*(i % DEP) + 4*ti, 28+ti, (ko[i] % 7 - t0)*KB, (i, ti), 0, SL)
def down_setup(a):
    a(f"s_lshl_b32 s24, s{S_W}, 4\ns_lshl_b32 s25, s{S_DTP}, 1\ns_add_u32 s24, s24, s25\ns_mov_b32 s{S_MASK}, 0x3333\ns_mov_b32 s{S_MASK+1}, 0")
    a(f"s_lshl_b64 s[{S_MASK}:{S_MASK+1}], s[{S_MASK}:{S_MASK+1}], s24\ns_add_u32 s44, s{S_GTB}, s25")
    a(f"s_lshr_b32 s45, s{S_W}, 1\ns_add_u32 s45, s45, s44\ns_and_b32 s46, s{S_W}, 1\ns_lshl_b32 s47, s{S_DFP}, 1\ns_add_u32 s46, s46, s47")
    a(f"s_mul_i32 s47, s45, {28*KB}\ns_lshl_b32 s48, s46, 11\ns_add_u32 s47, s47, s48\ns_add_u32 s49, s47, {XB}")
    a(f"s_mul_i32 s24, s44, {112*KB}\ns_mul_i32 s25, s{S_W}, {28*KB}\ns_add_u32 s24, s24, s25\ns_add_u32 s24, s24, {HO}\ns_add_u32 s25, s24, {112*KB}")
    a(f"s_bitcmp1_b32 s{S_W}, 1\ns_cselect_b32 s26, s25, s24\ns_cselect_b32 s25, s24, s25\ns_mov_b32 s24, s26")
def gu(a):
    ACC, A, C, T, D, X0 = 16, 256+224, 80, 96, 7, 8
    MU, RS, NL = 6, 7, 9
    accof = lambda t: 232 if t == 6 else ACC + 16*(t % 4)
    a(f"s_lshl_b32 s24, s{S_W}, 4\ns_mov_b32 s{S_MASK}, 0x3fff\ns_mov_b32 s{S_MASK+1}, 0\ns_lshl_b64 s[{S_MASK}:{S_MASK+1}], s[{S_MASK}:{S_MASK+1}], s24")
    a(f"s_add_u32 s27, s{S_GTB}, s{S_W}\ns_mul_i32 s24, s27, {28*KB}\ns_add_u32 s24, s24, {XB}")
    a(f"s_mul_i32 s25, s27, {14*256}\ns_add_u32 s25, s25, {SB}")
    a(f"s_mul_i32 s27, s27, {112*KB}\ns_mul_i32 s26, s{S_JJ}, {7*KB}\ns_add_u32 s27, s27, s26\ns_add_u32 s27, s27, {HO}")
    a(f"v_add_u32 v3, 0x10000, v0\nv_add_u32 v4, 0x20000, v0\nv_lshlrev_b32 v5, 4, v2\nv_add_u32 v5, 0x20000, v5")
    a(f"v_mul_u32_u24 v8, {7*256}, v2\nv_lshl_add_u32 v8, v1, 3, v8")
    seq = [(t, k) for k in range(28) for t in range(2)] + [(t, k) for t in range(2, 7) for k in range(28)]
    N = len(seq)
    ds = []
    def rd(n):
        t, k = seq[n]
        off = SLOT[t] + k*KB
        a(f"ds_read_b128 {R(A+4*(n%8),4)}, v{(0, 3, 4)[off >> 16]} offset:{off % 65536}"); ds.append(n)
    def dswait(tag):
        i = max(j for j, x in enumerate(ds) if x == tag)
        a(f"s_waitcnt lgkmcnt({min(15, len(ds)-1-i)})")
    for n in range(D): rd(n)
    for f in dma7(a, 3, SLOT[3], ('T', 3)): f()
    await_(a); next_tag(a)
    stamp(a, 8, 0); stamp(a, 16, 1); stamp(a, 1, 0, 'f')
    def xl(i): return lambda: ldn(a, X, 1, 24, lambda j: ('x', j), SL, i)
    def sl(i): return lambda: a.v(f"buffer_load_dwordx2 {vr(100+2*i,2)}, v8, {srd(WS)}, s25 offen offset:{i*256}{SL}", 'stat')
    for i in range(X0): xl(i)()
    at = {n: [] for n in range(N)}
    for i in range(X0, 28): at[2*(i-X0)].append(xl(i))
    for i in range(7): at[2*i+1].append(sl(i))
    for i, f in enumerate(dma7(a, 4, SLOT[4], ('T', 4))): at[57+3*i].append(f)
    for i, f in enumerate(dma7(a, 5, SLOT[5], ('T', 5)) + dma7(a, 6, SLOT[6], ('T', 6))): at[78+3*i].append(f)
    def epi(t):
        o = [('cs', t)] if t else []
        e = gu_epi(accof(t), C, T, MU, RS, NL)
        return [('csw', t)] + e[:16] + ([('cs', t+1)] if t < 6 else []) + e[16:] + [('st', t)]
    def emit(x):
        if isinstance(x, str): a(x); return 2 if x.startswith(('v_exp', 'v_rcp')) else 1
        if x[0] == 'cs':
            for q in range(4): a(f"ds_read_b128 {vr(C+4*q,4)}, v5 offset:{L_CS - 131072 + x[1]*128 + 32*q}"); ds.append(x)
            return 4
        if x[0] == 'csw': dswait(('cs', x[1])); return 1
        st1(a, T, 27, 0, ('h', x[1])); a("s_add_u32 s27, s27, 1024"); mid[0] = (mid[1] + 10 if x[1] == TE-1 else mid[0]); return 2
    def cost(x): return (2 if x.startswith(('v_exp', 'v_rcp')) else 1) if isinstance(x, str) else {'cs': 4, 'csw': 1, 'st': 2}[x[0]]
    todo = []; mid = [-1, 0]
    for n, (t, k) in enumerate(seq):
        if t == 0: a.wait(('x', k))
        if n % 2 == 0: dswait(min(n+1, N-1))
        acc = accof(t)
        a(f"{MF} {vr(acc,16)}, {R(A+4*(n%8),4)}, {R(X+4*k,4)}, {vr(acc,16) if k else 0}")
        if k == 27 and t >= 1: stamp(a, 2+t, 0, 'f')
        if n + D < N: rd(n + D)
        n0 = len(a.lines)
        for f in at[n]:
            if not ('X' in OPT and n > 56): f()
        used = len(a.lines) - n0 + (LC if len(a.lines) > n0 else 0)
        if n == 56: a("s_barrier")
        if n in (100, 132) and 'X' in OPT: a('s_barrier')
        elif n in (100, 132, 158): a.wait(('T', {100: 4, 132: 5, 158: 6}[n])); a("s_barrier")
        mid[1] = n
        if n == 161: down_setup(a); check_issue(a); used += 4
        if n == 171:
            a(f"s_sub_u32 s{S_TAG}, s{S_TAG}, 1"); check_done(a); next_tag(a); used += 4
        if n in (172, 174): ldn(a, 64, 1, 49, 'res', SL, (n-172)//2); used += 2
        if N0 == 5 and n >= 176 and n % 2 == 0: ld_h(a, (n-176)//4, (n//2) % 2); used += 2
        if N0 > 5 and n >= 196-2*N0: ld_h(a, (n-196+2*N0)//2, n % 2); used += 1
        if n == mid[0]: publish(a, ('h', TE-1)); next_tag(a); used += 4
        if n == 40: emit(('cs', 0))
        if n == 44:
            a.wait('stat'); todo = fin_stats_list(100, MU, RS, 10) + [f"v_mul_f32 v{NL}, {fhex(-LOG2E)}, v{RS}", f"v_rcp_f32 v{RS}, v{RS}"]
        if n == 58: todo += epi(0) + epi(1)
        if k == 3 and t > 2: todo += epi(t-1)
        budget = EB - used - (n % 2 == 1) + (t >= 5 and len(todo) > 2.6*(28-k))
        while todo and budget >= cost(todo[0]): budget -= emit(todo.pop(0))
        if n == 171: assert not any(x == ('st', 3) for x in todo)
        if t >= 3 and k == 27: assert not any(x == ('st', t-3) for x in todo), t
    print('epilogue items left', len(todo), 'mid', mid)
    for x in todo: emit(x)
    stamp(a, 2, 0, 'f')
    assert 0 < mid[0] < 171, mid
    e6 = epi(6); emit(e6[0])
    return e6[1:-1], lambda: st1(a, T, 27, 0, ('h', 6)), cost
DB = 3 if 'D' in OPT else 4
def down(a, pro1_label, end, tail):
    ACC, RES = 16, 80
    e6, st6, cost = tail
    skip, last, wb, go = a.label('Lskip'), a.label('Llast'), a.label('Lwb'), a.label('Lgo')
    a(f"s_cmp_lt_u32 s{S_JJ}, 14\ns_cbranch_scc1 {go}\ns_nop 10")
    vm = list(a.vm)
    for x in e6: a(x)
    st6(); next_tag(a); publish(a, ('h', 6))
    a(f"s_add_u32 s{S_TAG}, s{S_TAG}, 1\ns_branch {skip}\n{go}:")
    a.vm = vm
    stamp(a, 9, 0); stamp(a, 10, 0, 'f'); stamp(a, 10, 0); stamp(a, 17, 1); stamp(a, 11, 0, 'f')
    a.wait('res'); init_resid(a, ACC, 64)
    e6 = list(e6); pub = [-1]
    for k in range(28):
        for ti in range(2):
            a.wait((k, ti))
            for fi in range(2):
                acc = ACC + 16*(2*ti+fi)
                a(f"{MF} {vr(acc,16)}, {R(256+8*ko[k]+4*fi,4)}, {vr(RING+8*(k%DEP)+4*ti,4)}, {vr(acc,16) if k or acc == ACC else 0}")
                b = DB + 1 - fi
                while e6 and b >= cost(e6[0]):
                    b -= cost(e6[0]); a(e6.pop(0))
                    if not e6: st6(); pub[0] = 2*k + ti + PD; stamp(a, 18, 0, 'f')
            if 2*k + ti == pub[0]: publish(a, ('h', 6)); stamp(a, 9, 0, 'f'); print('publish at', pub)
            if 2*k + ti == PB: publish(a, ('h', 5)); next_tag(a)
            if ti == 0 and k + N0 in (NE - CI, 24 - CI): check_issue(a); assert k + N0 < NE or 0 < pub[0] <= 2*k
            if ti == 0 and k + N0 == NE: a(f"s_sub_u32 s{S_TAG}, s{S_TAG}, 1")
            if ti == 0 and k + N0 in (NE, 24): check_done(a); next_tag(a)
            if k + N0 < 28: ld_h(a, k + N0, ti)
        if k == 27: wkv_loads(a)
        if k in (0, 9, 18, 27): stamp(a, 12 + k//9, 0, 'f')
        if k == 20:
            for m in range(4): a(f"s_xor_b32 s30, s{S_W}, {m}\ns_mul_i32 s30, s30, {12*KB}\nv_add_u32 v{5+m}, s30, v0")
    a("s_nop 5")
    for m in range(1, 4):
        if m == 3: a("s_nop 3")
        for q in range(4): a(f"ds_write_b128 v{5+m}, {vr(ACC+16*m+4*q,4)} offset:{(4*(m-1)+q)*KB}")
    def l0_only(i0, i1):
        sk = a.label('Lnq')
        a(f"s_cmp_lg_u32 s{S_L}, 0\ns_cbranch_scc1 {sk}"); vm = list(a.vm); wq_pre(a, i0, i1); a.vm = vm; a(f"{sk}:")
    l0_only(0, G1)
    a("s_waitcnt lgkmcnt(0)\ns_barrier")
    for j in range(12): a(f"ds_read_b128 {vr(ACC+16+4*j,4)}, v5 offset:{j*KB}")
    l0_only(G1, G2)
    a(f"s_add_u32 s24, s47, {XA}\ns_mul_i32 s25, s45, {14*256}\ns_lshl_b32 s48, s46, 8\ns_add_u32 s25, s25, s48\ns_add_u32 s25, s25, {SA}")
    for w in range(1, 4):
        a(f"s_waitcnt lgkmcnt({12-4*w})")
        pk_add(a, ACC, ACC+16*w, 16)
    pack(a, ACC, RES)
    a(f"s_cmp_lg_u32 s{S_L}, 0\ns_cbranch_scc1 {last}")
    stamp(a, 16, 0, 'f')
    store_x(a, ACC, RES, 32, 24, 25, 5)
    wq_pre(a, G2, G3)
    publish(a)
    stamp(a, 11); stamp(a, 17, 0, 'f')
    nx = a.label('Lnx')
    a(f"s_barrier\ns_branch {nx}\n{skip}:\ns_cmp_lg_u32 s{S_L}, 0\ns_cbranch_scc1 {wb}")
    wq_pre(a, 0, G3)
    a(f"{nx}:")
    a(f"s_mov_b32 s{S_L}, 1\ns_add_u32 s{S_LB}, s{S_LB}, {LSTR}\ns_branch {pro1_label}")
    a(f"{last}:\ns_mul_i32 s24, s45, {32*896}\ns_lshl_b32 s25, s46, 6\ns_add_u32 s24, s24, s25")
    store_out(a, RES, 24, 5)
    a(f"s_branch {end}\n{wb}:")
    if 'W' in OPT:
        a(f"s_cmp_lg_u32 s{S_W}, 0\ns_cbranch_scc1 {end}\ns_sub_u32 s{S_TAG}, s{S_TAG}, 1\ns_mov_b64 s[{S_MASK}:{S_MASK+1}], -1")
        await_(a)
        a("buffer_wbl2 sc1\ns_waitcnt vmcnt(0)")
    a(f"s_branch {end}")
```

```python
import sys
from p_common import *
import p_prep, p_att, p_ffn
NAME = 'interleave_layers__grouped_kv_mqa__glu_gated_glu__prompt_kernel'
def roles_part(a, qt):
    a(f"v_lshrrev_b32 v12, 4, v0\nv_add_u32 v12, {64*qt}, v12\nv_cmp_gt_u32 vcc, s2, v12\nv_cmp_eq_u32 s[26:27], s57, v8")
    for hf in range(2):
        for i in range(4): a(f"v_cmp_eq_u32 s[{44+2*i}:{45+2*i}], {4*hf+i}, v8")
        a("s_nop 0" if hf else "s_and_b64 vcc, vcc, s[26:27]\ns_bcnt1_i32_b64 s26, vcc\ns_add_u32 s54, s54, s26")
        for i in range(4): a(f"s_bcnt1_i32_b64 s{44+2*i}, s[{44+2*i}:{45+2*i}]")
        a(f"s_pack_ll_b32_b16 s44, s44, s48\ns_pack_ll_b32_b16 s46, s46, s50\ns_lshl_b32 s46, s46, 8\ns_or_b32 s44, s44, s46\ns_add_u32 s{52+hf}, s{52+hf}, s44")
def roles_sum(a, force_slow):
    a("s_xor_b32 s52, s52, 0x20202020\ns_xor_b32 s53, s53, 0x20202020\ns_or_b32 s25, s52, s53\ns_lshl_b32 s44, s54, 3\ns_or_b32 s44, s44, s57\ns_or_b32 s24, s2, 0x100")
    if force_slow: a("s_mov_b32 s25, 1")
    a("s_cmp_eq_u32 s25, 0\ns_cselect_b32 s24, s44, s24")
def kernel(force_slow=False):
    a = A2()
    end, fin, pdone, again, retry, p1, l0 = [a.label(x) for x in ('Lend', 'Lfin', 'Lpdone', 'Lagain', 'Lretry', 'Lpro', 'Lfirst')]
    a(f"s_cmp_ge_u32 s2, 256\ns_cbranch_scc1 {fin}")
    stamp_head(a)
    a(f"s_load_dwordx2 s[{WS}:{WS+1}], s[0:1], 88\nv_lshrrev_b32 v1, 6, v0\nv_and_b32 v13, 63, v0\ns_getreg_b32 s57, hwreg(HW_REG_XCC_ID, 0, 4)")
    a(f"v_readfirstlane_b32 s{S_W}, v1\nv_and_b32 v1, 31, v13\nv_lshrrev_b32 v2, 5, v13\nv_lshlrev_b32 v0, 4, v13\nv_lshlrev_b32 v13, 2, v13")
    a(f"s_mov_b32 s{WS+2}, {WS_END}\ns_mov_b32 s{WS+3}, 0x20000\ns_mov_b32 s{S_SPIN}, 0\ns_mov_b32 s{S_L}, 0\ns_mov_b32 s{S_LB}, 0")
    a(f"s_getpc_b64 s[24:25]\nLpc:\ns_lshr_b32 s26, s2, 3\ns_lshl_b32 s26, s26, 2\ns_add_u32 s26, s26, s{S_W}\ns_lshl_b32 s26, s26, 10")
    a(f"v_add_u32 v8, s26, v0\nv_min_u32 v8, Lcode_end-Lpc-16, v8\nv_mov_b32 v9, s25\nv_add_co_u32 v8, vcc, s24, v8\nv_addc_co_u32 v9, vcc, 0, v9, vcc")
    a.v("global_load_dwordx4 v[244:247], v[8:9], off")
    a(f"s_waitcnt lgkmcnt(0)\ns_load_dword s56, s[{WS}:{WS+1}], {EPOCH}" if EPOCH < (1 << 20) else
      f"s_waitcnt lgkmcnt(0)\ns_mov_b32 s26, {EPOCH}\ns_load_dword s56, s[{WS}:{WS+1}], s26")
    p_prep.prep(a, pdone)
    a(f"{pdone}:"); load_out = p_prep.load_srd
    load_out(a, 72, 2048*896)
    a.wait0(); a("s_waitcnt lgkmcnt(0)")
    stamp(a, 1); stamp(a, 1, None, 'p')
    a(f"s_mul_i32 s{S_B}, s56, 0x9E3779B1\ns_add_u32 s{S_B}, s{S_B}, 0x5bd1e900\ns_andn2_b32 s{S_B}, s{S_B}, 0xff\ns_add_u32 s{S_TAG}, s{S_B}, 1\ns_barrier")
    w123, nepo, w0 = a.label('Lw'), a.label('Lne'), a.label('Lw')
    a(f"s_cmp_lg_u32 s{S_W}, 0\ns_cbranch_scc1 {w123}\ns_lshl_b32 s24, s2, 6\ns_add_u32 s24, s24, {GF1}\ns_add_u32 s{S_B}, s{S_B}, s57")
    publish_global(a, 24, 0x80)
    a(f"s_sub_u32 s{S_B}, s{S_B}, s57")
    a("s_mov_b32 s52, 0\ns_mov_b32 s53, 0\ns_mov_b32 s54, 0")
    a(f"v_lshlrev_b32 v12, 2, v0\ns_add_u32 s30, s{S_B}, 0x80")
    for qt in range(4): a(f"s_mov_b32 s31, {GF1 + 4096*qt}\nbuffer_load_dword v{16+qt}, v12, {srd(WS)}, s31 offen sc1")
    a("s_waitcnt vmcnt(0)")
    for qt in (2, 0, 1, 3):
        ok = a.label('Lqt')
        a(f"v_subrev_u32 v8, s30, v{16+qt}\nv_cmp_lt_u32 vcc, 15, v8\ns_cbranch_vccz {ok}")
        poll_global(a, GF1 + 4096*qt, 1, 0x80)
        a(f"{ok}:")
        if qt == 3: stamp(a, 9, None, 'p')
        roles_part(a, qt)
    roles_sum(a, force_slow)
    a(f"v_mov_b32 v8, s24\nv_mov_b32 v9, {L_MISC+1024}\nds_write_b32 v9, v8\ns_waitcnt lgkmcnt(0)\n{w123}:")
    a(f"s_barrier\nv_mov_b32 v9, {L_MISC+1024}\nds_read_b32 v8, v9\ns_waitcnt lgkmcnt(0)\nv_readfirstlane_b32 s24, v8\ns_nop 3")
    a(f"s_lshr_b32 s{S_MODE}, s24, 8\ns_and_b32 s25, s24, 7\ns_bfe_u32 s26, s24, 0x50003")
    a(f"s_lshr_b32 s{S_TB}, s26, 2\ns_lshl_b32 s27, s25, 3\ns_add_u32 s{S_TB}, s{S_TB}, s27\ns_and_b32 s{S_Q}, s26, 3\ns_and_b32 s{S_JJ}, s26, 15")
    a(f"s_and_b32 s{S_GTB}, s{S_TB}, 0x3c\ns_lshl_b32 s{S_FB}, s{S_GTB}, 6\ns_add_u32 s{S_FB}, s{S_FB}, {FL}")
    a(f"s_lshl_b32 s{S_FO}, s{S_JJ}, 2\ns_add_u32 s{S_FO}, s{S_FO}, s{S_W}\ns_lshl_b32 s{S_FO}, s{S_FO}, 2\ns_add_u32 s{S_FO}, s{S_FO}, s{S_FB}")
    a(f"s_cmp_ge_u32 s{S_JJ}, 7\ns_cselect_b32 s{S_DTP}, 1, 0\ns_cselect_b32 s27, 7, 0\ns_sub_u32 s{S_DFP}, s{S_JJ}, s27\ns_min_u32 s{S_DFP}, s{S_DFP}, 6")
    stamp(a, 2); stamp(a, 10, None, 'p')
    p_att.pro0(a)
    stamp(a, 3); stamp(a, 13, None, 'p')
    a("s_mov_b32 s29, 0")
    p_att.main_loop(a, p_att.att_prefetch(a, True), True)
    stamp(a, 4)
    a(f"s_branch {l0}\n{p1}:")
    a.vm = []
    p_att.pro1(a)
    a(f"s_mov_b32 s29, 0\n{again}:")
    p_att.main_loop(a, p_att.att_prefetch(a, False), False)
    stamp(a, 15)
    a(f"{l0}:")
    p_att.finish(a, retry)
    publish(a)
    stamp(a, 5, 0)
    p_att.oproj(a)
    p_ffn.down(a, p1, end, p_ffn.gu(a))
    a(f"{retry}:\ns_waitcnt vmcnt(0)")
    p_att.max_pass(a)
    p_att.kv_first(a)
    a(f"s_mov_b32 s29, 1\ns_branch {again}\n{end}:")
    a(f"s_or_b32 s25, s2, s{S_W}\ns_cbranch_scc1 {nepo}")
    a(f"s_add_u32 s56, s56, 1\nv_mov_b32 v14, s56\nv_mov_b32 v15, 0\ns_mov_b32 s25, {EPOCH}\ns_mov_b64 exec, 1\nbuffer_store_dword v14, v15, {srd(WS)}, s25 offen sc1\ns_mov_b64 exec, -1")
    a(f"{nepo}:")
    stamp_tail(a)
    a(f"{fin}:\ns_endpgm\nLcode_end:")
    return a.text()
if __name__ == '__main__':
    out = sys.argv[1]; opts = sys.argv[2] if len(sys.argv) > 2 else ''
    STAMP_ON[0] = 't' if 't' in opts else ('f' if 'f' in opts else ('p' if 'p' in opts else False))
    s = build_file([(NAME, kernel('s' in opts), 256, 256, 102)], [(NAME, 256, 256, LDS_SIZE)], single=True)
    open(out, 'w').write(s); assemble(out, NAME); print(len(s))
```
